```python
import torch

def _softmax(x, axis=-1):
    return torch.softmax(x, dim=axis)
def _gelu(x):
    return torch.nn.functional.gelu(x, approximate="tanh")
def _silu(x):
    return torch.nn.functional.silu(x)
def _sigmoid(x):
    return torch.sigmoid(x)
def _layernorm(x, axis=-1, eps=1e-5):
    m = x.mean(dim=axis, keepdim=True)
    v = x.var(dim=axis, keepdim=True, unbiased=False)
    return (x - m) / torch.sqrt(v + eps)
def _scatter_add(tgt, idx, src, axis=0):
    return tgt.clone().index_add_(axis, idx, src)
def _segment_sum(src, seg, n):
    out = torch.zeros((n,) + src.shape[1:], dtype=src.dtype)
    return out.index_add_(0, seg, src)
def _pad(x, pw):
    flat = tuple(v for pair in reversed(pw) for v in pair)
    return torch.nn.functional.pad(x, flat)

kernel_name = 'concat_heads__mha_block_cached__gqa_block_cached__near_ridge'

def setup_inputs():

    _w = (lambda a: (lambda t: t.to(torch.bfloat16) if t.is_floating_point() else t)(torch.as_tensor(a)))
    def _A_setup():
        B, Sq, D = 16, 192, 448
        H, Sk, Dh = 16, 512, 256
        return {
            "x": _w((lambda *s: torch.randn(*s, dtype=torch.bfloat16) * 0.8)(B, Sq, D)),
            "k_cache": _w((lambda *s: torch.randn(*s, dtype=torch.bfloat16) * 0.8)(B, H, Sk, Dh)),
            "v_cache": _w((lambda *s: torch.randn(*s, dtype=torch.bfloat16) * 0.05)(B, H, Sk, Dh)),
            "wq": _w((lambda *s: torch.randn(*s, dtype=torch.bfloat16) * 0.8)(D, H * Dh) * (D ** -0.5)),
            "wo": _w((lambda *s: torch.randn(*s, dtype=torch.bfloat16) * 0.05)(H * Dh, D) * ((H * Dh) ** -0.5)),
        }
    _A_in = _A_setup()

    def _B_setup():
        B, Sq, D = 16, 192, 448
        Hq, Hkv, Sk, Dh = 16, 16, 512, 256
        assert Hq % Hkv == 0, (Hq, Hkv)
        return {
            "x": _w((lambda *s: torch.randn(*s, dtype=torch.bfloat16) * 0.8)(B, Sq, D)),
            "k_cache": _w((lambda *s: torch.randn(*s, dtype=torch.bfloat16) * 0.8)(B, Hkv, Sk, Dh)),
            "v_cache": _w((lambda *s: torch.randn(*s, dtype=torch.bfloat16) * 0.05)(B, Hkv, Sk, Dh)),
            "wq": _w((lambda *s: torch.randn(*s, dtype=torch.bfloat16) * 0.8)(D, Hq * Dh) * (D ** -0.5)),
            "wo": _w((lambda *s: torch.randn(*s, dtype=torch.bfloat16) * 0.05)(Hq * Dh, D) * ((Hq * Dh) ** -0.5)),
        }
    _B_in = _B_setup()

    return {
        "A_x": _A_in["x"],
        "A_k_cache": _A_in["k_cache"],
        "A_v_cache": _A_in["v_cache"],
        "A_wq": _A_in["wq"],
        "A_wo": _A_in["wo"],
        "B_x": _B_in["x"],
        "B_k_cache": _B_in["k_cache"],
        "B_v_cache": _B_in["v_cache"],
        "B_wq": _B_in["wq"],
        "B_wo": _B_in["wo"],
    }

def reference(A_x, A_k_cache, A_v_cache, A_wq, A_wo, B_x, B_k_cache, B_v_cache, B_wq, B_wo):
    def _A_ref(x, k_cache, v_cache, wq, wo):
        B, Sq, D = x.shape
        H, Dh = 16, 256
        q = (lambda x, *d: x.permute(*d))((x @ wq).reshape(B, Sq, H, Dh), 0, 2, 1, 3)
        scores = torch.einsum("bhqd,bhkd->bhqk", q, k_cache) * (Dh ** -0.5)
        p = _softmax(scores, axis=-1)
        o = torch.einsum("bhqk,bhkd->bhqd", p, v_cache)
        return (lambda x, *d: x.permute(*d))(o, 0, 2, 1, 3).reshape(B, Sq, H * Dh) @ wo

    def _B_ref(x, k_cache, v_cache, wq, wo):
        B, Sq, D = x.shape
        Hq, Dh = 16, 256
        Hkv = k_cache.shape[1]
        rep = Hq // Hkv
        q = (lambda x, *d: x.permute(*d))((x @ wq).reshape(B, Sq, Hq, Dh), 0, 2, 1, 3)
        k = (lambda x, n, axis: torch.repeat_interleave(x, n, dim=axis))(k_cache, rep, axis=1)
        v = (lambda x, n, axis: torch.repeat_interleave(x, n, dim=axis))(v_cache, rep, axis=1)
        scores = torch.einsum("bhqd,bhkd->bhqk", q, k) * (Dh ** -0.5)
        p = _softmax(scores, axis=-1)
        o = torch.einsum("bhqk,bhkd->bhqd", p, v)
        return (lambda x, *d: x.permute(*d))(o, 0, 2, 1, 3).reshape(B, Sq, Hq * Dh) @ wo

    a = _A_ref(A_x, A_k_cache, A_v_cache, A_wq, A_wo)
    b = _B_ref(B_x, B_k_cache, B_v_cache, B_wq, B_wo)
    return torch.concatenate([a, b], axis=-1)
```

```python
class Ins:
    __slots__ = ("text", "kind", "tag", "need", "cost", "n", "note")

    def __init__(self, text, kind, tag=None, need=None, cost=1, note=None):
        self.text = text
        self.kind = kind
        self.tag = tag
        self.need = need
        self.cost = cost
        self.n = None
        self.note = note


def mfma(t): return Ins(t, "mfma")
def valu(t): return Ins(t, "valu")
def trans(t): return Ins(t, "trans", cost=2)
def salu(t): return Ins(t, "salu", cost=0)
def ds(t, tag=None): return Ins(t, "ds", tag=tag)
def vmem(t, tag=None): return Ins(t, "vmem", tag=tag, cost=4)
def label(t): return Ins(t + ":", "label", cost=0)
def raw(t): return Ins(t, "raw", cost=0)
def wait_vm(*need): return Ins(None, "wvm", need=list(need), cost=0)
def wait_lg(*need): return Ins(None, "wlg", need=list(need), cost=0)


class Loop:
    def __init__(self, body, trips):
        self.body = body
        self.trips = trips


class Cond:
    def __init__(self, body, pred):
        self.body = body
        self.pred = pred


class SetEnv:
    def __init__(self, fn):
        self.fn = fn


class Repeat:
    def __init__(self, body, trips, var):
        self.body = body
        self.trips = trips
        self.var = var


def flat(items):
    for it in items:
        if isinstance(it, (list, tuple)):
            yield from flat(it)
        elif it is not None:
            yield it


def trace(items, env):
    for it in flat(items):
        if isinstance(it, Ins):
            yield it
        elif isinstance(it, Loop):
            for _ in range(it.trips):
                yield from trace(it.body, env)
        elif isinstance(it, Repeat):
            for k in range(it.trips):
                env[it.var] = k
                yield from trace(it.body, env)
        elif isinstance(it, Cond):
            if it.pred(env):
                yield from trace(it.body, env)
        elif isinstance(it, SetEnv):
            it.fn(env)
        else:
            raise TypeError(it)


def solve_waits(prog, verbose=False):
    vmq = []
    lgq = []
    ndma = 0
    tile_last = {}
    ntilewait = 0
    env = {}
    for ins in trace(prog, env):
        if ins.kind == "vmem":
            vmq.append(ins.tag)
            if ins.tag == "dma":
                ndma += 1
                if ndma % 4 == 0:
                    tile_last[ndma // 4 - 1] = len(vmq) - 1
        elif ins.kind == "ds":
            lgq.append(ins.tag)
        elif ins.kind == "wvm":
            n = 63
            for t in ins.need:
                if t == "tile":
                    k = ntilewait
                    ntilewait += 1
                    assert k in tile_last, f"tile {k} waited before issue"
                    idx = tile_last[k]
                elif t == "all":
                    idx = len(vmq) - 1
                else:
                    idx = max((i for i in range(len(vmq) - 1, -1, -1) if vmq[i] == t), default=None)
                    assert idx is not None, f"vm tag {t} never issued"
                n = min(n, len(vmq) - 1 - idx)
            ins.n = n if ins.n is None else min(ins.n, n)
        elif ins.kind == "wlg":
            n = 15
            for t in ins.need:
                if t == "all":
                    idx = len(lgq) - 1
                else:
                    idx = None
                    for i in range(len(lgq) - 1, -1, -1):
                        if lgq[i] == t:
                            idx = i
                            break
                    assert idx is not None, f"lgkm tag {t} never issued"
                n = min(n, len(lgq) - 1 - idx)
            ins.n = n if ins.n is None else min(ins.n, n)
    return dict(ndma=ndma, ntilewait=ntilewait)


def emit(items, out):
    for it in flat(items):
        if isinstance(it, Ins):
            if it.kind == "wvm":
                assert it.n is not None, "unvisited vm wait"
                out.append(f"    s_waitcnt vmcnt({it.n})")
            elif it.kind == "wlg":
                assert it.n is not None, "unvisited lgkm wait"
                out.append(f"    s_waitcnt lgkmcnt({it.n})")
            elif it.kind == "label":
                out.append(it.text)
            else:
                out.append("    " + it.text)
        elif isinstance(it, (Loop, Repeat, Cond)):
            emit(it.body, out)
        elif isinstance(it, SetEnv):
            pass
        else:
            raise TypeError(it)


class Item:
    __slots__ = ("ins", "earliest", "cost", "scalar", "alone")

    def __init__(self, ins, earliest=0, alone=False):
        self.ins = list(flat([ins]))
        self.earliest = earliest
        self.cost = sum(i.cost for i in self.ins)
        self.scalar = all(i.cost == 0 for i in self.ins)
        self.alone = alone


def schedule(mfmas, fixed_vec, fixed_scal, queues, cap=2, drain=True):
    out = []
    queues = [list(q) for q in queues]
    for g, m in enumerate(mfmas):
        out.append(m)
        sc = list(fixed_scal.get(g, []))
        vec = list(fixed_vec.get(g, []))
        used = sum(i.cost for i in vec)
        nsc = len(sc)
        for q in queues:
            if q and q[0].scalar and q[0].earliest <= g and nsc == 0:
                it = q.pop(0)
                sc += it.ins
                nsc += len(it.ins)
        picked = []
        progress = True
        while progress and used < cap:
            progress = False
            for q in queues:
                if not q:
                    continue
                it = q[0]
                if it.earliest > g:
                    continue
                if it.scalar:
                    continue
                if it.alone and used > 0:
                    continue
                if (not it.alone) and used + it.cost > cap:
                    continue
                q.pop(0)
                picked += it.ins
                used += it.cost
                progress = True
                break
        out += sc + vec + picked
    if drain:
        for q in queues:
            for it in q:
                out += it.ins
            q.clear()
    return out, queues
```

```python
import sys, struct, math
from asmlib import *

NAME = "concat_heads__mha_block_cached__gqa_block_cached__near_ridge"
K1 = "attn_main_kernel"
K2 = "attn_reduce_kernel"

CFG = dict(D=4, nt=True, dbg=None, B=10.0)
for a in sys.argv[1:]:
    if "=" in a:
        k, v = a.split("=", 1)
        try:
            v = eval(v)
        except Exception:
            pass
        CFG[k] = v
D = CFG["D"]
NT = " nt" if CFG["nt"] else ""
SLOT = 16384
RING = 10 * SLOT

FB = 192
VA = 224
KA = 232
DVKV = 236
DVW = 240
VX = 244
VL = 247
T0 = 248
S_BASE, P_BASE, E_BASE, NEGM, MISC = 96, 144, 168, 176, 188
A_L, A_ONES = 192, 204

sK, sV, sW, sX, sWS = 8, 12, 16, 20, 24
sRET = 28
sU, sCNT, sWVOFF, sWR, sRD, sVAB, sKAB = 30, 31, 32, 33, 34, 35, 36
sKO, sVO, sWO, sSC, sINCA, sINCB = 37, 38, 39, 40, 42, 43
sWOP, sXO, sSTO, sPAO, sHEAD, sDEL, sB, sWV = 44, 46, 47, 48, 49, 50, 51, 52
sT = 54


def vr(b, n=4): return f"v[{b}:{b+n-1}]"
def ar(b, n=4): return f"a[{b}:{b+n-1}]"
def sr(b, n=4): return f"s[{b}:{b+n-1}]"
def f2u(x): return struct.unpack("<I", struct.pack("<f", x))[0]


MF = "v_mfma_f32_16x16x32_bf16"
def fb(G): return FB + (G % 8) * 4


def qacc(t, qt): return 24 * (t >> 1) + 8 * qt + 4 * (t & 1)
def xfr(ks, qt): return (ks * 3 + qt) * 4
def qf(s, qt): return (s * 3 + qt) * 4
def sreg(par, kt, qt): return S_BASE + par * 24 + (kt * 3 + qt) * 4
def preg(par, qt): return P_BASE + par * 12 + qt * 4
def oacc(t, qt): return (t * 3 + qt) * 4
def of(hd, s, qt): return hd * 96 + (s * 3 + qt) * 4
def pacc(buf, nt_, qt): return buf * 48 + (nt_ * 3 + qt) * 4


def reads_v(G):
    a, b = G >> 3, G & 7
    f = fb(G)
    return [ds(f"ds_read_b64_tr_b16 {vr(f,2)}, v{VA+b} offset:{a*256}", tag=("f", G)),
            ds(f"ds_read_b64_tr_b16 {vr(f+2,2)}, v{VA+b} offset:{8192+a*256}", tag=("f", G))]


def reads_k(G):
    kt, s = G >> 3, G & 7
    f = fb(G)
    return [ds(f"ds_read_b128 {vr(f)}, v{KA+(s&3)} offset:{kt*8192+(s>>2)*256}", tag=("f", G))]


def reads_o(G):
    s2, nt_ = G >> 2, G & 3
    f = fb(G)
    return [ds(f"ds_read_b64_tr_b16 {vr(f,2)}, v{KA+nt_} offset:{s2*4096}", tag=("f", G)),
            ds(f"ds_read_b64_tr_b16 {vr(f+2,2)}, v{KA+nt_} offset:{s2*4096+2048}", tag=("f", G))]


READS = dict(V=reads_v, K=reads_k, O=reads_o)


def mf_qp(ks):
    out = []
    for t in range(16):
        for qt in range(3):
            d = qacc(t, qt)
            c = "0" if ks == 0 else vr(d)
            out.append(mfma(f"{MF} {vr(d)}, {vr(fb(t))}, {ar(xfr(ks,qt))}, {c}"))
    return out


def mf_qk(par, zero_c=False):
    out = []
    for G in range(16):
        kt, s = G >> 3, G & 7
        for qt in range(3):
            d = sreg(par, kt, qt)
            if s == 0:
                c = "0" if zero_c else vr(NEGM + 4 * qt)
            else:
                c = vr(d)
            out.append(mfma(f"{MF} {vr(d)}, {vr(fb(G))}, {vr(qf(s,qt))}, {c}"))
    return out


def mf_pv(par, first=False):
    pre = []
    for qt in range(3):
        d = A_L + 4 * qt
        c = "0" if first else ar(d)
        pre.append(mfma(f"{MF} {ar(d)}, {ar(A_ONES)}, {vr(preg(par,qt))}, {c}"))
    out = []
    for t in range(16):
        for qt in range(3):
            d = oacc(t, qt)
            c = "0" if first else ar(d)
            out.append(mfma(f"{MF} {ar(d)}, {vr(fb(t))}, {vr(preg(par,qt))}, {c}"))
    return pre, out


def mf_op(buf, hd, f):
    out = []
    for G in range(16):
        s2, nt_ = G >> 2, G & 3
        for qt in range(3):
            d = pacc(buf, nt_, qt)
            c = "0" if (hd == 0 and f == 0 and s2 == 0) else ar(d)
            out.append(mfma(f"{MF} {ar(d)}, {vr(fb(G))}, {vr(of(hd, 4*f+s2, qt))}, {c}"))
    return out


def adv(reg):
    return [salu(f"s_add_u32 s{reg}, s{reg}, {SLOT}"),
            salu(f"s_cmp_eq_u32 s{reg}, {RING}"),
            salu(f"s_cselect_b32 s{reg}, 0, s{reg}")]


def dma_items(kind, e, winc=None):
    srd, off, dv, nt = {"K": (sK, sKO, DVKV, NT), "V": (sV, sVO, DVKV, NT), "W": (sW, sWO, DVW, "")}[kind]
    items = [Item([salu(f"s_add_u32 m0, s{sWR}, s{sWVOFF}")], earliest=e)]
    for n in range(4):
        items.append(Item([vmem(f"buffer_load_dwordx4 v{dv+n}, {sr(srd)}, s{off} offen offset:{n*1024}{nt} lds",
                                tag="dma")], earliest=e + 1 + 2 * n, alone=True))
    if kind == "W":
        upd = salu(f"s_add_u32 s{off}, s{off}, s{winc}")
    else:
        upd = salu(f"s_add_u32 s{off}, s{off}, {SLOT}")
    items.append(Item([upd] + adv(sWR), earliest=e + 8))
    return items


def dma_now(kind, winc=None):
    out = []
    for it in dma_items(kind, 0, winc):
        out += it.ins
        if it.ins[0].text.startswith("s_add_u32 m0"):
            out.append(salu("s_nop 0"))
    return out


def setup_next(ntype):
    base = sVAB if ntype == "V" else sKAB
    return adv(sRD) + [salu(f"s_sub_u32 s{sDEL}, s{sRD}, s{base}"), salu(f"s_mov_b32 s{base}, s{sRD}")]


def addr_updates(ntype):
    regs = [VA + b for b in range(8)] if ntype == "V" else [KA + b for b in range(4)]
    return [valu(f"v_add_u32 v{r}, s{sDEL}, v{r}") for r in regs]


def phase(ctype, mfs, ntype, readahead=True, pre=(), dma=None, winc=None, queues=(), sync_extra=(),
          setup=True, tail=()):
    pre = list(pre)
    np_ = len(pre)
    allm = pre + list(mfs)
    fv, fs = {}, {}
    def gap(G, k): return np_ + 3 * G + k
    def addv(g, ins): fv.setdefault(g, []).extend(ins)
    def adds(g, ins): fs.setdefault(g, []).extend(ins)
    for G in range(16):
        H = G + D
        if H < 16:
            addv(gap(G, 0), READS[ctype](H))
        elif readahead:
            addv(gap(G, 0), READS[ntype](H - 16))
        if G + 1 < 16:
            adds(gap(G, 2), [wait_lg(("f", G + 1))])
        elif readahead:
            adds(gap(G, 2), [wait_lg(("f", 0))])
    if readahead:
        adds(gap(16 - D - 1, 2), [wait_vm("tile", *sync_extra), salu("s_barrier")])
    qs = []
    if setup:
        sc = setup_next(ntype)
        adds(gap(0, 0), sc[:3])
        adds(gap(0, 1), sc[3:])
        ups = addr_updates(ntype)
        if ntype == ctype:
            n = len(ups)
            for b, u in enumerate(ups):
                G = (16 - n) + b - D
                addv(gap(G, 1), [u])
        else:
            qs.append([Item([u], earliest=gap(1, 0)) for u in ups])
    if dma:
        qs.append(dma_items(dma, gap(1, 0), winc))
    qs += [list(q) for q in queues]
    body, _ = schedule(allm, fv, fs, qs)
    return body + list(tail)


def restart(ntype, extra=()):
    out = [wait_vm("tile", *extra), salu("s_barrier")]
    for G in range(D):
        out += READS[ntype](G)
    out.append(wait_lg(("f", 0)))
    return out


def softmax_items(par, e0=0, e1=0):
    items = []
    pairs = [(kt, qt, h) for kt in range(2) for qt in range(3) for h in range(2)]
    prev = None
    for n, (kt, qt, h) in enumerate(pairs):
        t0 = E_BASE + 2 * (n % 4)
        s = sreg(par, kt, qt) + 2 * h
        e = e0 if kt == 0 else e1
        items.append(Item([trans(f"v_exp_f32 v{t0}, v{s}")], earliest=e))
        if prev:
            items.append(Item([prev], earliest=e))
        items.append(Item([trans(f"v_exp_f32 v{t0+1}, v{s+1}")], earliest=e))
        prev = valu(f"v_cvt_pk_bf16_f32 v{preg(par,qt)+2*kt+h}, v{t0}, v{t0+1}")
    p = [preg(par, qt) + j for qt in range(3) for j in range(4)]
    acc = MISC
    k0 = [preg(par, qt) + j for qt in range(3) for j in range(2)]
    k1 = [preg(par, qt) + 2 + j for qt in range(3) for j in range(2)]
    items.append(Item([valu(f"v_or3_b32 v{acc}, v{k0[0]}, v{k0[1]}, v{k0[2]}")]))
    items.append(Item([prev]))
    items.append(Item([valu(f"v_or3_b32 v{acc}, v{acc}, v{k0[3]}, v{k0[4]}")]))
    items.append(Item([valu(f"v_or3_b32 v{acc}, v{acc}, v{k0[5]}, v{k1[0]}")]))
    items.append(Item([valu(f"v_or3_b32 v{acc}, v{acc}, v{k1[1]}, v{k1[2]}")]))
    items.append(Item([valu(f"v_or3_b32 v{acc}, v{acc}, v{k1[3]}, v{k1[4]}")]))
    items.append(Item([valu(f"v_or_b32 v{acc}, v{acc}, v{k1[5]}")]))
    items.append(Item([valu(f"v_and_b32 v{acc}, 0x40004000, v{acc}")]))
    items.append(Item([valu(f"v_cmp_ne_u32 vcc, 0, v{acc}")]))
    return items


stubs = []
def check(par):
    n = len(stubs)
    stubs.append((n, par))
    return [salu(f"s_cbranch_vccnz L_stub{n}"), label(f"L_back{n}")]


def rowmax(par, qt, m, t1):
    s0, s1 = sreg(par, 0, qt), sreg(par, 1, qt)
    return [valu(f"v_max3_f32 v{m}, v{s0}, v{s0+1}, v{s0+2}"),
            valu(f"v_max3_f32 v{m}, v{m}, v{s0+3}, v{s1}"),
            valu(f"v_max3_f32 v{m}, v{m}, v{s1+1}, v{s1+2}"),
            valu(f"v_max_f32 v{m}, v{m}, v{s1+3}"),
            valu(f"v_mov_b32 v{t1}, v{m}"),
            salu("s_nop 1"),
            valu(f"v_permlane32_swap_b32 v{m}, v{t1}"),
            salu("s_nop 1"),
            valu(f"v_max_f32 v{m}, v{m}, v{t1}"),
            valu(f"v_mov_b32 v{t1}, v{m}"),
            salu("s_nop 1"),
            valu(f"v_permlane16_swap_b32 v{m}, v{t1}"),
            salu("s_nop 1"),
            valu(f"v_max_f32 v{m}, v{m}, v{t1}")]


def init_max():
    out = [salu("s_nop 7")]
    for qt in range(3):
        m, t1 = T0 + 2 * qt, T0 + 2 * qt + 1
        out += rowmax(0, qt, m, t1)
        out.append(valu(f"v_add_f32 v{m}, s{sB}, v{m}"))
        for kt in range(2):
            for j in range(4):
                r = sreg(0, kt, qt) + j
                out.append(valu(f"v_sub_f32 v{r}, v{r}, v{m}"))
        for j in range(4):
            out.append(valu(f"v_sub_f32 v{NEGM+4*qt+j}, 0, v{m}"))
    out.append(salu("s_nop 1"))
    return out


def rare_path(par):
    out = [label(f"L_rare{par}"), salu("s_nop 15"), salu("s_nop 15")]
    m, t1, f = T0, T0 + 1, T0 + 2
    for qt in range(3):
        out += rowmax(par, qt, m, t1)
        out.append(valu(f"v_add_f32 v{m}, s{sB}, v{m}"))
        out.append(valu(f"v_max_f32 v{m}, 0, v{m}"))
        for pp in (par, 1 - par):
            for kt in range(2):
                for j in range(4):
                    r = sreg(pp, kt, qt) + j
                    out.append(valu(f"v_sub_f32 v{r}, v{r}, v{m}"))
        for j in range(4):
            out.append(valu(f"v_sub_f32 v{NEGM+4*qt+j}, v{NEGM+4*qt+j}, v{m}"))
        out.append(valu(f"v_exp_f32_e64 v{f}, -v{m}"))
        out.append(salu("s_nop 1"))
        regs = [oacc(t, qt) + j for t in range(16) for j in range(4)] + [A_L + 4 * qt + j for j in range(4)]
        for r in regs:
            out.append(valu(f"v_accvgpr_read_b32 v{t1}, a{r}"))
            out.append(valu(f"v_mul_f32 v{t1}, v{f}, v{t1}"))
            out.append(valu(f"v_accvgpr_write_b32 a{r}, v{t1}"))
        for kt in range(2):
            for h in range(2):
                s = sreg(par, kt, qt) + 2 * h
                out.append(trans(f"v_exp_f32 v{T0+3}, v{s}"))
                out.append(trans(f"v_exp_f32 v{T0+4}, v{s+1}"))
                out.append(salu("s_nop 1"))
                out.append(valu(f"v_cvt_pk_bf16_f32 v{preg(par,qt)+2*kt+h}, v{T0+3}, v{T0+4}"))
    out += [salu("s_nop 7"), salu(f"s_setpc_b64 {sr(sRET,2)}")]
    return out


def q_convert():
    out = [salu("s_nop 7")]
    blocks = []
    for b in range(24):
        s = 8 * b
        d = 4 * b
        seq = [valu(f"v_pk_mul_f32 {vr(s+2*j,2)}, {vr(s+2*j,2)}, {sr(sSC,2)}") for j in range(4)]
        seq += [valu(f"v_cvt_pk_bf16_f32 v{d+j}, v{s+2*j}, v{s+2*j+1}") for j in range(4)]
        sw = [valu(f"v_permlane32_swap_b32 v{d}, v{d+2}"), valu(f"v_permlane32_swap_b32 v{d+1}, v{d+3}"),
              salu("s_nop 0"),
              valu(f"v_permlane16_swap_b32 v{d}, v{d+2}"), valu(f"v_permlane16_swap_b32 v{d+1}, v{d+3}")]
        blocks.append((seq, sw))
    for b in range(24):
        out += blocks[b][0]
        if b > 0:
            out += blocks[b - 1][1]
    out += [salu("s_nop 1")] + blocks[23][1]
    out.append(salu("s_nop 1"))
    return out


def o_convert():
    out = [salu("s_nop 7")]
    rc = [T0, T0 + 2, T0 + 4]
    for qt in range(3):
        out.append(valu(f"v_accvgpr_read_b32 v{rc[qt]}, a{A_L+4*qt}"))
    for qt in range(3):
        out.append(trans(f"v_rcp_f32 v{rc[qt]}, v{rc[qt]}"))
    out.append(salu("s_nop 0"))
    for qt in range(3):
        out.append(valu(f"v_mov_b32 v{rc[qt]+1}, v{rc[qt]}"))
    tmp = [E_BASE - 0]
    n = 0
    for s in range(8):
        for qt in range(3):
            d = of(1, s, qt)
            for half in range(2):
                t = 2 * s + half
                a = oacc(t, qt)
                tt = FB + 4 * (n % 8)
                n += 1
                out += [valu(f"v_accvgpr_read_b32 v{tt+j}, a{a+j}") for j in range(4)]
                out += [valu(f"v_pk_mul_f32 {vr(tt,2)}, {vr(tt,2)}, {vr(rc[qt],2)}"),
                        valu(f"v_pk_mul_f32 {vr(tt+2,2)}, {vr(tt+2,2)}, {vr(rc[qt],2)}"),
                        valu(f"v_cvt_pk_bf16_f32 v{d+2*half}, v{tt}, v{tt+1}"),
                        valu(f"v_cvt_pk_bf16_f32 v{d+2*half+1}, v{tt+2}, v{tt+3}")]
    out.append(salu("s_nop 1"))
    return out


def ws_ops(op, base_sgpr, regs, tag):
    out = []
    for n, r in enumerate(regs):
        if n % 4 == 0:
            out.append(salu(f"s_add_u32 s{sT}, s{base_sgpr}, {n*1024}"))
        out.append(vmem(f"{op} {vr(r)}, v{T0+7}, {sr(sWS)}, s{sT} offen offset:{(n%4)*1024}", tag=tag))
    return out


def x_loads(ks_list):
    out = []
    for ks in ks_list:
        for qt in range(3):
            out.append(vmem(f"buffer_load_dwordx4 {ar(xfr(ks,qt))}, v{VX+qt}, {sr(sX)}, s{sXO} offen offset:{ks*64}",
                            tag=("x", ks)))
    return out


def pat_wq():
    t, u = T0, T0 + 1
    out = [valu(f"v_lshrrev_b32 v{t}, 5, v{VL}"),
           valu(f"v_and_b32 v{u}, 31, v{VL}"),
           valu(f"v_lshlrev_b32 v{t+2}, 1, v{t}"),
           valu(f"v_xor_b32 v{u}, v{u}, v{t+2}"),
           valu(f"v_lshlrev_b32 v{u}, 4, v{u}"),
           valu(f"v_lshlrev_b32 v{t}, 13, v{t}"),
           salu(f"s_and_b32 s{sT}, s{sWV}, 1"),
           salu(f"s_lshl_b32 s{sT}, s{sT}, 17"),
           salu(f"s_lshr_b32 s{sT+1}, s{sWV}, 1"),
           salu(f"s_lshl_b32 s{sT+1}, s{sT+1}, 15"),
           salu(f"s_add_u32 s{sT}, s{sT}, s{sT+1}"),
           valu(f"v_add_u32 v{t}, s{sT}, v{t}")]
    for n in range(4):
        kn = 8 * (n >> 1) + 2 * (n & 1)
        out.append(valu(f"v_xor_b32 v{DVW+n}, {n<<6}, v{u}"))
        out.append(valu(f"v_add_u32 v{DVW+n}, v{DVW+n}, v{t}"))
        if kn:
            out.append(valu(f"v_add_u32 v{DVW+n}, {kn*8192 - n*1024}, v{DVW+n}"))
    return out


def pat_wo():
    t, u = T0, T0 + 1
    out = [valu(f"v_lshrrev_b32 v{t}, 3, v{VL}"),
           salu(f"s_lshl_b32 s{sT}, s{sWV}, 5"),
           valu(f"v_add_u32 v{t}, s{sT}, v{t}"),
           valu(f"v_mul_u32_u24 v{t}, 896, v{t}"),
           valu(f"v_lshrrev_b32 v{u}, 4, v{VL}"),
           valu(f"v_lshlrev_b32 v{u}, 1, v{u}"),
           valu(f"v_and_b32 v{t+2}, 7, v{VL}"),
           valu(f"v_xor_b32 v{u}, v{u}, v{t+2}"),
           valu(f"v_lshlrev_b32 v{u}, 4, v{u}"),
           valu(f"v_add_u32 v{DVW}, v{t}, v{u}")]
    for n in range(1, 4):
        out.append(valu(f"v_add_u32 v{DVW+n}, {n*6144}, v{DVW}"))
    return out


def pat_oa():
    t, u = T0, T0 + 1
    out = [valu(f"v_lshrrev_b32 v{t}, 2, v{VL}"),
           valu(f"v_lshrrev_b32 v{u}, 1, v{t}"),
           valu(f"v_and_b32 v{u}, 3, v{u}"),
           valu(f"v_lshlrev_b32 v{u}, 1, v{u}"),
           valu(f"v_bfe_u32 v{t+2}, v{VL}, 1, 1"),
           valu(f"v_xor_b32 v{u}, v{u}, v{t+2}"),
           valu(f"v_lshlrev_b32 v{u}, 4, v{u}"),
           valu(f"v_lshlrev_b32 v{t}, 7, v{t}"),
           valu(f"v_add_u32 v{t}, v{t}, v{u}"),
           valu(f"v_and_b32 v{u}, 1, v{VL}"),
           valu(f"v_lshlrev_b32 v{u}, 3, v{u}"),
           valu(f"v_add_u32 v{t}, v{t}, v{u}")]
    for n in range(4):
        out.append(valu(f"v_xor_b32 v{KA+n}, {n<<5}, v{t}"))
        out.append(valu(f"v_add_u32 v{KA+n}, s{sRD}, v{KA+n}"))
    out.append(salu(f"s_mov_b32 s{sKAB}, s{sRD}"))
    return out


def dump_regs(regs, kind, slot):
    out = [salu("s_nop 7"), salu("s_nop 7"),
           valu(f"v_lshlrev_b32 v{T0+7}, 4, v{VL}"),
           salu(f"s_lshl_b32 s{sT+2}, s2, 18"),
           salu(f"s_lshl_b32 s{sT+3}, s{sWV}, 16"),
           salu(f"s_add_u32 s{sT+2}, s{sT+2}, s{sT+3}"),
           salu(f"s_add_u32 s{sT+2}, s{sT+2}, {128<<20}")]
    for n, r in enumerate(regs):
        out.append(salu(f"s_add_u32 s{sT}, s{sT+2}, {(slot+n)*1024}"))
        rr = vr(r) if kind == "v" else ar(r)
        out.append(vmem(f"buffer_store_dwordx4 {rr}, v{T0+7}, {sr(sWS)}, s{sT} offen", tag="dbg"))
    out.append(salu("s_nop 1"))
    return out


def main_kernel():
    P = []
    pro = [raw(x) for x in f"""
s_cmp_ge_u32 s2, 256
s_cbranch_scc1 L_exit
s_load_dwordx16 s[64:79], s[0:1], 0
s_load_dwordx4 s[80:83], s[0:1], 64
s_load_dwordx2 s[4:5], s[0:1], 96
v_lshrrev_b32 v1, 6, v0
v_and_b32 v{VL}, 63, v0
v_readfirstlane_b32 s{sWV}, v1
s_and_b32 s3, s2, 7
s_lshr_b32 s6, s2, 3
s_lshr_b32 s53, s3, 2
s_and_b32 s3, s3, 3
s_lshl_b32 s3, s3, 1
s_lshr_b32 s7, s6, 4
s_add_u32 s3, s3, s7
s_and_b32 s6, s6, 15
s_lshl_b32 s{sHEAD}, s3, 1
s_waitcnt lgkmcnt(0)
s_cmp_eq_u32 s53, 0
s_cselect_b32 s{sX}, s64, s74
s_cselect_b32 s{sX+1}, s65, s75
s_cselect_b32 s{sK}, s66, s76
s_cselect_b32 s{sK+1}, s67, s77
s_cselect_b32 s{sV}, s68, s78
s_cselect_b32 s{sV+1}, s69, s79
s_cselect_b32 s{sW}, s70, s80
s_cselect_b32 s{sW+1}, s71, s81
s_cselect_b32 s{sWOP}, s72, s82
s_cselect_b32 s{sWOP+1}, s73, s83
s_mov_b32 s{sX+2}, 2752512
s_mov_b32 s{sX+3}, 0x00020000
s_mov_b32 s{sK+2}, 67108864
s_mov_b32 s{sK+3}, 0x00020000
s_mov_b32 s{sV+2}, 67108864
s_mov_b32 s{sV+3}, 0x00020000
s_mov_b32 s{sW+2}, 3670016
s_mov_b32 s{sW+3}, 0x00020000
s_mov_b32 s{sWS}, s4
s_mov_b32 s{sWS+1}, s5
s_mov_b32 s{sWS+2}, 288620544
s_mov_b32 s{sWS+3}, 0x00020000
s_lshl_b32 s{sWVOFF}, s{sWV}, 12
s_mul_i32 s{sXO}, s6, 172032
s_lshl_b32 s7, s6, 4
s_add_u32 s7, s7, s{sHEAD}
s_lshl_b32 s{sKO}, s7, 18
s_mov_b32 s{sVO}, s{sKO}
s_lshl_b32 s{sWO}, s{sHEAD}, 9
s_mov_b32 s{sINCA}, 262144
s_mov_b32 s{sINCB}, 262144
s_lshl_b32 s7, s53, 4
s_add_u32 s7, s7, s6
s_lshl_b32 s7, s7, 3
s_add_u32 s7, s7, s3
s_mul_i32 s{sPAO}, s7, 172032
s_mul_i32 s3, s{sWV}, 43008
s_add_u32 s{sPAO}, s{sPAO}, s3
s_mul_i32 s{sSTO}, s2, 98304
s_mul_i32 s3, s{sWV}, 24576
s_add_u32 s{sSTO}, s{sSTO}, s3
s_add_u32 s{sSTO}, s{sSTO}, {48<<20}
s_mov_b32 s{sSC}, {f2u(math.log2(math.e)/16.0):#x}
s_mov_b32 s{sSC+1}, {f2u(math.log2(math.e)/16.0):#x}
s_mov_b32 s{sB}, {f2u(CFG['B']):#x}
s_mov_b32 s{sWR}, 0
s_mov_b32 s{sRD}, 0
s_mov_b32 s{sVAB}, 0
s_mov_b32 s{sKAB}, 0
s_mov_b32 s{sU}, 0
""".strip().splitlines()]
    P += pro
    t, u = T0, T0 + 1
    P += [valu(f"v_lshrrev_b32 v{t}, 2, v{VL}"),
          valu(f"v_and_b32 v{u}, 7, v{t}"),
          valu(f"v_lshlrev_b32 v{u}, 1, v{u}"),
          valu(f"v_bfe_u32 v{t+2}, v{VL}, 1, 1"),
          valu(f"v_xor_b32 v{u}, v{u}, v{t+2}"),
          valu(f"v_lshlrev_b32 v{u}, 4, v{u}"),
          valu(f"v_lshlrev_b32 v{t}, 9, v{t}"),
          valu(f"v_add_u32 v{t}, v{t}, v{u}"),
          valu(f"v_and_b32 v{u}, 1, v{VL}"),
          valu(f"v_lshlrev_b32 v{u}, 3, v{u}"),
          valu(f"v_add_u32 v{t}, v{t}, v{u}")]
    P += [valu(f"v_xor_b32 v{VA+b}, {b<<5}, v{t}") for b in range(8)]
    P += [valu(f"v_and_b32 v{t}, 15, v{VL}"),
          valu(f"v_and_b32 v{u}, 7, v{t}"),
          valu(f"v_lshlrev_b32 v{u}, 1, v{u}"),
          valu(f"v_lshrrev_b32 v{t+2}, 4, v{VL}"),
          valu(f"v_xor_b32 v{u}, v{u}, v{t+2}"),
          valu(f"v_lshlrev_b32 v{u}, 4, v{u}"),
          valu(f"v_lshlrev_b32 v{t}, 9, v{t}"),
          valu(f"v_add_u32 v{t}, v{t}, v{u}")]
    P += [valu(f"v_xor_b32 v{KA+b}, {b<<6}, v{t}") for b in range(4)]
    P += [valu(f"v_lshrrev_b32 v{t}, 5, v{VL}"),
          valu(f"v_and_b32 v{u}, 31, v{VL}"),
          valu(f"v_lshlrev_b32 v{t+2}, 1, v{t}"),
          valu(f"v_xor_b32 v{u}, v{u}, v{t+2}"),
          valu(f"v_lshlrev_b32 v{u}, 4, v{u}"),
          valu(f"v_lshlrev_b32 v{t}, 9, v{t}"),
          valu(f"v_add_u32 v{t}, v{t}, v{u}"),
          valu(f"v_add_u32 v{t}, s{sWVOFF}, v{t}")]
    P += [valu(f"v_xor_b32 v{DVKV+n}, {n<<6}, v{t}") for n in range(4)]
    P += pat_wq()
    P += [valu(f"v_and_b32 v{t}, 15, v{VL}"),
          salu(f"s_mul_i32 s{sT}, s{sWV}, 48"),
          valu(f"v_add_u32 v{t}, s{sT}, v{t}"),
          valu(f"v_mul_u32_u24 v{t}, 896, v{t}"),
          valu(f"v_lshrrev_b32 v{u}, 4, v{VL}"),
          valu(f"v_lshlrev_b32 v{u}, 4, v{u}"),
          valu(f"v_add_u32 v{VX}, v{t}, v{u}"),
          valu(f"v_add_u32 v{VX+1}, 14336, v{VX}"),
          valu(f"v_add_u32 v{VX+2}, 28672, v{VX}"),
          valu(f"v_mov_b32 v{t}, 0x3f803f80")]
    P += [valu(f"v_accvgpr_write_b32 a{A_ONES+j}, v{t}") for j in range(4)]
    for k in range(8):
        P += dma_now("W", sINCA)

    U = [label("L_unit")]
    U += x_loads(range(0, 4))
    U += restart("V", extra=[("x", 0)])
    for ks in range(14):
        q = []
        if ks < 5:
            q.append([Item([i], earliest=3, alone=True) for i in x_loads(range(4 + 2 * ks, 6 + 2 * ks))])
        if ks < 6:
            dma, winc = "W", sINCA
        else:
            dma, winc = ["K", "K", "V", "K", "V", "K", "V", "K"][ks - 6], None
        last = ks == 13
        U += phase("V", mf_qp(ks), "K" if last else "V", readahead=not last, dma=dma, winc=winc, queues=q,
                   sync_extra=[("x", ks + 1)] if not last else ())
        if ks == 5:
            U += [raw(f"s_cmp_eq_u32 s{sU}, 0"), raw("s_cbranch_scc0 L_wsw1")]
            U.append(Cond([raw(f"s_lshl_b32 s{sWO}, s{sHEAD}, 9"),
                           raw(f"s_add_u32 s{sWO}, s{sWO}, 512"),
                           raw("s_branch L_wsw2")], lambda e: e["u"] == 0))
            U.append(label("L_wsw1"))
            U.append(Cond([raw(f"s_mov_b32 s{sW}, s{sWOP}"), raw(f"s_mov_b32 s{sW+1}, s{sWOP+1}"),
                           raw(f"s_mul_i32 s{sWO}, s{sHEAD}, {256*896}"),
                           raw(f"s_mov_b32 s{sINCA}, {128*896}"),
                           raw(f"s_mov_b32 s{sINCB}, {(128 - 3*128*896) & 0xffffffff:#x}")] + pat_wo(),
                          lambda e: e["u"] == 1))
            U.append(label("L_wsw2"))
    U += q_convert()
    if CFG["dbg"] == "q":
        U += dump_regs([4 * b for b in range(24)], "v", 0)
    U += restart("K")
    U += phase("K", mf_qk(0, zero_c=True), "K", dma="V")
    U += init_max()
    U += phase("K", mf_qk(1), "V", dma="K", queues=[softmax_items(0)])

    def iteration(i, first=False):
        par, np_ = i & 1, (i + 1) & 1
        a_c, a_a = 2 * i + 2, 2 * i + 3
        def kind(a):
            p = a + 8
            if p >= 32:
                return "W", (sINCB if (p - 32) % 4 == 3 else sINCA)
            if p == 31:
                return "V", None
            return ("K" if p % 2 == 1 else "V"), None
        sm = softmax_items(np_, e0=3, e1=3)
        pre, m = mf_pv(par, first)
        k, w = kind(a_c)
        c_body = phase_split("V", m, "K", pre=pre, dma=k, winc=w, stream=sm)
        k, w = kind(a_a)
        a_body = phase("K", mf_qk(par), "V", dma=k, winc=w, queues=[sm], tail=check(np_))
        return c_body + a_body

    def phase_split(ctype, mfs, ntype, pre, dma, winc, stream):
        pre = list(pre)
        np_ = len(pre)
        allm = pre + list(mfs)
        fv, fs = {}, {}
        def gap(G, k): return np_ + 3 * G + k
        for G in range(16):
            H = G + D
            fv.setdefault(gap(G, 0), []).extend(READS[ctype](H) if H < 16 else READS[ntype](H - 16))
            fs.setdefault(gap(G, 2), []).append(wait_lg(("f", (G + 1) % 16)))
        fs.setdefault(gap(16 - D - 1, 2), []).extend([wait_vm("tile"), salu("s_barrier")])
        sc = setup_next(ntype)
        fs.setdefault(gap(0, 0), []).extend(sc[:3])
        fs.setdefault(gap(0, 1), []).extend(sc[3:])
        q_addr = [Item([u], earliest=gap(1, 0)) for u in addr_updates(ntype)]
        q_dma = dma_items(dma, gap(1, 0), winc)
        body, left = schedule(allm, fv, fs, [q_addr, q_dma, stream], drain=False)
        for it in left[0] + left[1]:
            body += it.ins
        stream[:] = left[2]
        for it in stream:
            it.earliest = 0
        return body

    U += iteration(0, first=True)
    lp = [label("L_att")] + iteration(1) + iteration(2)
    lp += [raw(f"s_sub_u32 s{sCNT}, s{sCNT}, 1"), raw(f"s_cmp_lg_u32 s{sCNT}, 0"), raw("s_cbranch_scc1 L_att")]
    U.append(raw(f"s_mov_b32 s{sCNT}, 4"))
    U.append(Loop(lp, 4))
    for i in range(9, 14):
        U += iteration(i)
    pre, m = mf_pv(0)
    U += phase("V", m, "V", pre=pre, dma="W", winc=sINCA, queues=[softmax_items(1, e0=3, e1=3)], tail=check(1))
    pre, m = mf_pv(1)
    U += phase("V", m, "V", pre=pre, dma="W", winc=sINCB, readahead=False)
    U.append(valu(f"v_lshlrev_b32 v{T0+7}, 4, v{VL}"))
    U += [raw(f"s_cmp_eq_u32 s{sU}, 0"), raw("s_cbranch_scc1 L_noo0")]
    U.append(Cond(ws_ops("buffer_load_dwordx4", sSTO, [4 * n for n in range(24)], "o0"), lambda e: e["u"] == 1))
    U.append(label("L_noo0"))
    U += o_convert()
    if CFG["dbg"] == "o":
        U += dump_regs([96 + 4 * b for b in range(24)], "v", 0)
    U += [raw(f"s_cmp_eq_u32 s{sU}, 1"), raw("s_cbranch_scc1 L_p4")]
    U.append(Cond(ws_ops("buffer_store_dwordx4", sSTO, [96 + 4 * n for n in range(24)], "st")
                  + [raw(f"s_mov_b32 s{sU}, 1"), raw("s_branch L_unit")], lambda e: e["u"] == 0))
    P.append(Repeat(U, 2, "u"))

    P.append(label("L_p4"))
    P += pat_oa()
    P.append(valu(f"v_lshlrev_b32 v{T0+7}, 4, v{VL}"))
    P += restart("O", extra=["o0"])

    def epilogue_items(buf, e0):
        items = []
        n = 0
        for pair in range(2):
            for qt in range(3):
                tt = T0 - 0
                a0, a1 = pacc(buf, 2 * pair, qt), pacc(buf, 2 * pair + 1, qt)
                rd = VA
                items += [Item([valu(f"v_accvgpr_read_b32 v{rd+j}, a{a0+j}")], earliest=e0) for j in range(4)]
                items += [Item([valu(f"v_accvgpr_read_b32 v{rd+4+j}, a{a1+j}")], earliest=e0) for j in range(4)]
                o = T0 + 0 if n % 2 == 0 else DVKV
                items += [Item([valu(f"v_cvt_pk_bf16_f32 v{o+j}, v{rd+2*j}, v{rd+2*j+1}")], earliest=e0) for j in range(4)]
                idx = pair * 3 + qt
                if idx % 4 == 0:
                    items.append(Item([salu(f"s_add_u32 s{sT+1}, s{sPAO}, {idx*1024}")], earliest=e0))
                items.append(Item([vmem(f"buffer_store_dwordx4 {vr(o)}, v{T0+7}, {sr(sWS)}, s{sT+1} offen offset:{(idx%4)*1024}",
                                        tag="pst")], earliest=e0, alone=True))
                n += 1
        items.append(Item([salu(f"s_add_u32 s{sPAO}, s{sPAO}, 6144")], earliest=e0))
        return items

    def chunk(buf, epi_prev, last=False, dma=True):
        out = []
        stream = epilogue_items(1 - buf, 6) if epi_prev else []
        for w in range(4):
            hd, f = w >> 1, w & 1
            winc = sINCB if w == 3 else sINCA
            is_last = last and w == 3
            qs = [stream] if w == 0 or stream else []
            if w < 3:
                b = phase_keep("O", mf_op(buf, hd, f), dma="W" if dma else None, winc=winc, stream=stream)
            else:
                b = phase("O", mf_op(buf, hd, f), "O", readahead=not is_last, dma="W" if dma else None, winc=winc,
                          queues=[stream], setup=not is_last)
            out += b
        return out

    def phase_keep(ctype, mfs, dma, winc, stream):
        allm = list(mfs)
        fv, fs = {}, {}
        def gap(G, k): return 3 * G + k
        for G in range(16):
            H = G + D
            fv.setdefault(gap(G, 0), []).extend(READS[ctype](H % 16))
            fs.setdefault(gap(G, 2), []).append(wait_lg(("f", (G + 1) % 16)))
        fs.setdefault(gap(16 - D - 1, 2), []).extend([wait_vm("tile"), salu("s_barrier")])
        sc = setup_next(ctype)
        fs.setdefault(gap(0, 0), []).extend(sc[:3])
        fs.setdefault(gap(0, 1), []).extend(sc[3:])
        for b, u_ in enumerate(addr_updates(ctype)):
            fv.setdefault(gap(12 + b - D, 1), []).append(u_)
        q_dma = dma_items(dma, gap(1, 0), winc) if dma else []
        body, left = schedule(allm, fv, fs, [q_dma, stream], drain=False)
        for it in left[0]:
            body += it.ins
        stream[:] = left[1]
        for it in stream:
            it.earliest = 0
        return body

    P += chunk(0, False)
    lp = [label("L_p4l")] + chunk(1, True) + chunk(0, True)
    lp += [raw(f"s_sub_u32 s{sCNT}, s{sCNT}, 1"), raw(f"s_cmp_lg_u32 s{sCNT}, 0"), raw("s_cbranch_scc1 L_p4l")]
    P.append(raw(f"s_mov_b32 s{sCNT}, 2"))
    P.append(Loop(lp, 2))
    P += chunk(1, True, dma=False)
    P += chunk(0, True, last=True, dma=False)
    P.append(salu("s_nop 7"))
    for it in epilogue_items(0, 0):
        P += it.ins
        if it.ins[0].kind == "valu" and "cvt" in it.ins[0].text:
            pass
    P.append(raw("s_waitcnt vmcnt(0)"))
    P.append(label("L_exit"))
    P.append(raw("s_endpgm"))
    for n, par in stubs:
        P += [label(f"L_stub{n}"), raw(f"s_call_b64 {sr(sRET,2)}, L_rare{par}"), raw(f"s_branch L_back{n}")]
    R = rare_path(0) + rare_path(1)
    return P, R


def reduce_kernel():
    L = f"""
s_cmp_ge_u32 s2, 1344
s_cbranch_scc1 L_rexit
s_load_dwordx2 s[4:5], s[0:1], 80
s_load_dwordx2 s[6:7], s[0:1], 96
v_lshrrev_b32 v1, 6, v0
v_and_b32 v2, 63, v0
v_readfirstlane_b32 s3, v1
s_lshl_b32 s16, s2, 2
s_add_u32 s16, s16, s3
s_mul_hi_u32 s17, s16, {-(-(1<<32)//168)}
s_mul_i32 s18, s17, 168
s_sub_u32 s18, s16, s18
s_waitcnt lgkmcnt(0)
s_mov_b32 s8, s6
s_mov_b32 s9, s7
s_mov_b32 s10, 288620544
s_mov_b32 s11, 0x00020000
s_mov_b32 s12, s4
s_mov_b32 s13, s5
s_mov_b32 s14, 5505024
s_mov_b32 s15, 0x00020000
s_mul_i32 s19, s17, {8*172032}
s_lshl_b32 s20, s18, 10
s_add_u32 s19, s19, s20
v_lshlrev_b32 v3, 4, v2
""".strip().splitlines()
    for j in range(8):
        L.append(f"buffer_load_dwordx4 v[{8+4*j}:{11+4*j}], v3, s[8:11], s19 offen")
        if j < 7:
            L.append("s_add_u32 s19, s19, 172032")
    L += f"""
s_mul_hi_u32 s21, s18, {-(-(1<<32)//42)}
s_mul_i32 s22, s21, 42
s_sub_u32 s22, s18, s22
s_mul_hi_u32 s23, s22, {-(-(1<<32)//6)}
s_mul_i32 s24, s23, 6
s_sub_u32 s24, s22, s24
s_cmp_ge_u32 s24, 3
s_cselect_b32 s25, 1, 0
s_mul_i32 s26, s25, 3
s_sub_u32 s26, s24, s26
s_and_b32 s27, s17, 15
s_lshr_b32 s28, s17, 4
s_mul_i32 s27, s27, 192
s_mul_i32 s29, s21, 48
s_add_u32 s27, s27, s29
s_lshl_b32 s29, s26, 4
s_add_u32 s27, s27, s29
s_mul_i32 s27, s27, 1792
s_mul_i32 s28, s28, 896
s_add_u32 s27, s27, s28
s_lshl_b32 s29, s23, 7
s_add_u32 s27, s27, s29
s_lshl_b32 s29, s25, 6
s_add_u32 s27, s27, s29
v_and_b32 v4, 15, v2
v_mul_u32_u24 v4, 1792, v4
v_lshrrev_b32 v5, 4, v2
v_lshlrev_b32 v5, 3, v5
v_add_u32 v4, v4, v5
""".strip().splitlines()
    for j in range(8):
        L.append(f"s_waitcnt vmcnt({7-j})")
        for r in range(4):
            src = 8 + 4 * j + r
            if j == 0:
                L.append(f"v_lshlrev_b32 v{40+2*r}, 16, v{src}")
                L.append(f"v_and_b32 v{41+2*r}, 0xffff0000, v{src}")
            else:
                L.append(f"v_lshlrev_b32 v6, 16, v{src}")
                L.append(f"v_and_b32 v7, 0xffff0000, v{src}")
                L.append(f"v_add_f32 v{40+2*r}, v{40+2*r}, v6")
                L.append(f"v_add_f32 v{41+2*r}, v{41+2*r}, v7")
    for r in range(4):
        L.append(f"v_cvt_pk_bf16_f32 v{48+r}, v{40+2*r}, v{41+2*r}")
    L += ["buffer_store_dwordx2 v[48:49], v4, s[12:15], s27 offen",
          "buffer_store_dwordx2 v[50:51], v4, s[12:15], s27 offen offset:32",
          "s_waitcnt vmcnt(0)"]
    return L


def build():
    P, R = main_kernel()
    prog = P + R
    info = solve_waits(P)
    out = []
    out.append(f"; @launch kernel={K1} grid=(256,1,1) block=(256,1,1) lds=163840")
    out.append(f"; @launch kernel={K2} grid=(1344,1,1) block=(256,1,1) lds=0")
    out.append('.amdgcn_target "amdgcn-amd-amdhsa--gfx950"')
    out.append(".text")
    out += [f".globl {K1}", ".p2align 8", f".type {K1},@function", f"{K1}:"]
    emit(prog, out)
    out += [f".globl {K2}", ".p2align 8", f".type {K2},@function", f"{K2}:"]
    out += ["    " + x for x in reduce_kernel()]
    out += ["L_rexit:", "    s_endpgm"]
    out.append('.section .rodata,"a"')
    for k, nv, ns, ao in ((K1, 512, 96, 256), (K2, 64, 40, 64)):
        out += [".p2align 6", f".amdhsa_kernel {k}",
                f"  .amdhsa_next_free_vgpr {nv}", f"  .amdhsa_next_free_sgpr {ns}", f"  .amdhsa_accum_offset {ao}",
                "  .amdhsa_group_segment_fixed_size 0", "  .amdhsa_kernarg_size 104",
                "  .amdhsa_user_sgpr_count 2", "  .amdhsa_user_sgpr_kernarg_segment_ptr 1",
                "  .amdhsa_system_sgpr_workgroup_id_x 1", ".end_amdhsa_kernel"]
    return "\n".join(out) + "\n", info


if __name__ == "__main__":
    txt, info = build()
    path = CFG.get("out", f"cdna_kernels/{NAME}.s")
    open(path, "w").write(txt)
    print("wrote", path, len(txt), "bytes", info)
```

```python
class Ins:
    __slots__ = ("text", "kind", "tag", "need", "cost", "n", "note")

    def __init__(self, text, kind, tag=None, need=None, cost=1, note=None):
        self.text = text
        self.kind = kind
        self.tag = tag
        self.need = need
        self.cost = cost
        self.n = None
        self.note = note


def mfma(t): return Ins(t, "mfma")
def valu(t): return Ins(t, "valu")
def trans(t): return Ins(t, "trans", cost=2)
def salu(t): return Ins(t, "salu", cost=0)
def ds(t, tag=None): return Ins(t, "ds", tag=tag)
def vmem(t, tag=None): return Ins(t, "vmem", tag=tag, cost=4)
def label(t): return Ins(t + ":", "label", cost=0)
def raw(t): return Ins(t, "raw", cost=0)
def wait_vm(*need): return Ins(None, "wvm", need=list(need), cost=0)
def wait_lg(*need): return Ins(None, "wlg", need=list(need), cost=0)


class Loop:
    def __init__(self, body, trips):
        self.body = body
        self.trips = trips


class Cond:
    def __init__(self, body, pred, cost=4):
        self.body = body
        self.pred = pred
        self.cost = cost


class SetEnv:
    def __init__(self, fn):
        self.fn = fn


class Repeat:
    def __init__(self, body, trips, var):
        self.body = body
        self.trips = trips
        self.var = var


def flat(items):
    for it in items:
        if isinstance(it, (list, tuple)):
            yield from flat(it)
        elif it is not None:
            yield it


def trace(items, env):
    for it in flat(items):
        if isinstance(it, Ins):
            yield it
        elif isinstance(it, Loop):
            for _ in range(it.trips):
                yield from trace(it.body, env)
        elif isinstance(it, Repeat):
            for k in range(it.trips):
                env[it.var] = k
                yield from trace(it.body, env)
        elif isinstance(it, Cond):
            if it.pred(env):
                yield from trace(it.body, env)
        elif isinstance(it, SetEnv):
            it.fn(env)
        else:
            raise TypeError(it)


def solve_waits(prog, verbose=False):
    vmq = []
    lgq = []
    ndma = 0
    tile_last = {}
    ntilewait = 0
    env = {}
    for ins in trace(prog, env):
        if ins.kind == "vmem":
            vmq.append(ins.tag)
            if ins.tag == "dma":
                ndma += 1
                if ndma % 4 == 0:
                    tile_last[ndma // 4 - 1] = len(vmq) - 1
        elif ins.kind == "ds":
            lgq.append(ins.tag)
        elif ins.kind == "wvm":
            n = 63
            for t in ins.need:
                if t == "tile" or (isinstance(t, tuple) and t[0] == "tiles"):
                    ntilewait += 1 if t == "tile" else t[1]
                    k = ntilewait - 1
                    assert k in tile_last, f"tile {k} waited before issue"
                    idx = tile_last[k]
                elif t == "all":
                    idx = len(vmq) - 1
                else:
                    idx = max((i for i in range(len(vmq) - 1, -1, -1) if vmq[i] == t), default=None)
                    assert idx is not None, f"vm tag {t} never issued"
                n = min(n, len(vmq) - 1 - idx)
            ins.n = n if ins.n is None else min(ins.n, n)
        elif ins.kind == "wlg":
            n = 15
            for t in ins.need:
                if t == "all":
                    idx = len(lgq) - 1
                else:
                    idx = None
                    for i in range(len(lgq) - 1, -1, -1):
                        if lgq[i] == t:
                            idx = i
                            break
                    assert idx is not None, f"lgkm tag {t} never issued"
                n = min(n, len(lgq) - 1 - idx)
            ins.n = n if ins.n is None else min(ins.n, n)
    return dict(ndma=ndma, ntilewait=ntilewait)


def emit(items, out):
    for it in flat(items):
        if isinstance(it, Ins):
            if it.kind == "wvm":
                assert it.n is not None, "unvisited vm wait"
                out.append(f"    s_waitcnt vmcnt({it.n})")
            elif it.kind == "wlg":
                assert it.n is not None, "unvisited lgkm wait"
                out.append(f"    s_waitcnt lgkmcnt({it.n})")
            elif it.kind == "label":
                out.append(it.text)
            else:
                out.append("    " + it.text)
        elif isinstance(it, (Loop, Repeat, Cond)):
            emit(it.body, out)
        elif isinstance(it, SetEnv):
            pass
        else:
            raise TypeError(it)


class Item:
    __slots__ = ("ins", "earliest", "cost", "scalar", "alone")

    def __init__(self, ins, earliest=0, alone=False):
        self.ins = list(flat([ins]))
        self.earliest = earliest
        self.cost = sum(i.cost for i in self.ins)
        self.scalar = all(i.cost == 0 for i in self.ins)
        self.alone = alone


def schedule(mfmas, fixed_vec, fixed_scal, queues, cap=2, drain=True):
    out = []
    queues = [list(q) for q in queues]
    for g, m in enumerate(mfmas):
        out.append(m)
        sc = list(fixed_scal.get(g, []))
        vec = list(fixed_vec.get(g, []))
        used = sum(i.cost for i in vec)
        nsc = len(sc)
        for q in queues:
            if q and q[0].scalar and q[0].earliest <= g and nsc == 0:
                it = q.pop(0)
                sc += it.ins
                nsc += len(it.ins)
        picked = []
        progress = True
        while progress and used < cap:
            progress = False
            for q in queues:
                if not q:
                    continue
                it = q[0]
                if it.earliest > g:
                    continue
                if it.scalar:
                    continue
                if it.alone and used > 0:
                    continue
                if (not it.alone) and used + it.cost > cap:
                    continue
                q.pop(0)
                picked += it.ins
                used += it.cost
                progress = True
                break
        out += sc + vec + picked
    if drain:
        for q in queues:
            for it in q:
                out += it.ins
            q.clear()
    return out, queues
```

```python
import sys, struct, math
from asmlib import *

NAME = "concat_heads__mha_block_cached__gqa_block_cached__near_ridge"
K1 = "attn_main_kernel"
KF = NAME + "_kernel"
K2 = "attn_reduce_kernel"

CFG = dict(D=4, nt=True, dbg=None, B=10.0, order="A", cap=3, fuse=True, pstf=" sc1", wspread=[0, 9, 10, 11])
for a in sys.argv[1:]:
    if "=" in a:
        k, v = a.split("=", 1)
        try:
            v = eval(v)
        except Exception:
            pass
        CFG[k] = v
D = CFG["D"]
NT = " nt" if CFG["nt"] else ""
SLOT = 16384
NSLOT = 10
RING = NSLOT * SLOT

FB = 192
VA = 224
KA = 232
DVKV = 236
DVW = 240
DVX = 244
VL = 248
XAP = 249
LN16 = 250
PROFV = 251
T0 = 252
S_BASE, P_BASE, E_BASE, NEGM, MISC = 96, 144, 168, 176, 188
A_L, A_ONES, A_OF = 192, 204, 96

sK, sV, sW, sX, sWS = 8, 12, 16, 20, 24
sRET = 28
sU, sCNT, sWVOFF, sWR, sRD, sVAB, sKAB = 30, 31, 32, 33, 34, 35, 36
sKO, sVO, sWO, sSC, sINCA, sINCB = 37, 38, 39, 40, 42, 43
sWOP, sXO, sSTO, sPAO, sHEAD, sDEL, sB, sWV = 44, 46, 47, 48, 49, 50, 51, 52
sT = 54
sXS = 60
sWQB = 63
sN = 64
sSO = 72
sGRP = 74
sBL, sHL, sWM1, sWM2 = 81, 82, 83, 73


def vr(b, n=4): return f"v[{b}:{b+n-1}]"
def ar(b, n=4): return f"a[{b}:{b+n-1}]"
def sr(b, n=4): return f"s[{b}:{b+n-1}]"
def f2u(x): return struct.unpack("<I", struct.pack("<f", x))[0]


MF = "v_mfma_f32_16x16x32_bf16"
def fb(G): return FB + (G % 8) * 4


def qacc(t, qt): return 24 * (t >> 1) + 8 * qt + 4 * (t & 1)
def xfr(ks, qt): return (ks * 3 + qt) * 4
def qf(s, qt): return (s * 3 + qt) * 4
def sreg(par, kt, qt): return S_BASE + par * 24 + (kt * 3 + qt) * 4
def preg(par, qt): return P_BASE + par * 12 + qt * 4
def oacc(t, qt): return (t * 3 + qt) * 4
A_KEEP = 208
NKEEP = CFG.get("nkeep", 11)
A_DUMMY = 252
VTO = T0 + 3
sTS, sTO = 76, 80
def of(hd, s, qt):
    b = s * 3 + qt
    if hd == 0 and b < NKEEP:
        return ar(A_KEEP + 4 * b)
    return vr(hd * 96 + b * 4)
def pacc(buf, nt_, qt): return buf * 48 + (nt_ * 3 + qt) * 4


def qp_order():
    X = lambda j: [("X", j, qt) for qt in range(3)]
    W = lambda a, b: [("W", k) for k in range(a, b)]
    if CFG["order"] == "A":
        return X(0) + W(0, 2) + X(1) + W(2, 4) + X(2) + W(4, 6) + X(3) + W(6, 14)
    if CFG["order"] == "B":
        return X(0) + W(0, 2) + X(1) + W(2, 6) + X(2) + W(6, 10) + X(3) + W(10, 14)
    if CFG["order"] == "C":
        return X(0) + W(0, 2) + X(1) + W(2, 5) + X(2) + W(5, 8) + X(3) + W(8, 14)
ORDER = qp_order()
NQ = len(ORDER)
ATT_ORDER = ["K", "K"] + ["V", "K"] * 14 + ["V", "V"]
assert len(ATT_ORDER) == 32


def reads_v(G):
    a, b = G >> 3, G & 7
    f = fb(G)
    return [ds(f"ds_read_b64_tr_b16 {vr(f,2)}, v{VA+b} offset:{a*256}", tag=("f", G)),
            ds(f"ds_read_b64_tr_b16 {vr(f+2,2)}, v{VA+b} offset:{8192+a*256}", tag=("f", G))]


def reads_k(G):
    kt, s = G >> 3, G & 7
    f = fb(G)
    return [ds(f"ds_read_b128 {vr(f)}, v{KA+(s&3)} offset:{kt*8192+(s>>2)*256}", tag=("f", G))]


def reads_o(G):
    s2, nt_ = G >> 2, G & 3
    f = fb(G)
    return [ds(f"ds_read_b64_tr_b16 {vr(f,2)}, v{KA+nt_} offset:{s2*4096}", tag=("f", G)),
            ds(f"ds_read_b64_tr_b16 {vr(f+2,2)}, v{KA+nt_} offset:{s2*4096+2048}", tag=("f", G))]


READS = dict(V=reads_v, K=reads_k, O=reads_o)


def mf_qp(ks):
    out = []
    for t in range(16):
        for qt in range(3):
            d = qacc(t, qt)
            c = "0" if ks == 0 else vr(d)
            out.append(mfma(f"{MF} {vr(d)}, {vr(fb(t))}, {ar(xfr(ks,qt))}, {c}"))
    return out


def mf_qk(par, zero_c=False):
    out = []
    for G in range(16):
        kt, s = G >> 3, G & 7
        for qt in range(3):
            d = sreg(par, kt, qt)
            if s == 0:
                c = "0" if zero_c else vr(NEGM + 4 * qt)
            else:
                c = vr(d)
            out.append(mfma(f"{MF} {vr(d)}, {vr(fb(G))}, {vr(qf(s,qt))}, {c}"))
    return out


def mf_pv(par, first=False):
    pre = []
    for qt in range(3):
        d = A_L + 4 * qt
        c = "0" if first else ar(d)
        pre.append(mfma(f"{MF} {ar(d)}, {ar(A_ONES)}, {vr(preg(par,qt))}, {c}"))
    out = []
    for t in range(16):
        for qt in range(3):
            d = oacc(t, qt)
            c = "0" if first else ar(d)
            out.append(mfma(f"{MF} {ar(d)}, {vr(fb(t))}, {vr(preg(par,qt))}, {c}"))
    return pre, out


def mf_op(buf, hd, f):
    out = []
    for G in range(16):
        s2, nt_ = G >> 2, G & 3
        for qt in range(3):
            d = pacc(buf, nt_, qt)
            c = "0" if (hd == 0 and f == 0 and s2 == 0) else ar(d)
            out.append(mfma(f"{MF} {ar(d)}, {vr(fb(G))}, {of(hd, 4*f+s2, qt)}, {c}"))
    return out


def adv(reg, dst=None):
    dst = reg if dst is None else dst
    return [salu(f"s_add_u32 s{dst}, s{reg}, {SLOT}"),
            salu(f"s_cmp_eq_u32 s{dst}, {RING}"),
            salu(f"s_cselect_b32 s{dst}, 0, s{dst}")]


def dma_tile(srd, dv, nt, pre, soff, post, e, stride=1):
    items = [Item([salu(f"s_add_u32 m0, s{sWR}, s{sWVOFF}")] + pre, earliest=e)]
    for n in range(4):
        items.append(Item([vmem(f"buffer_load_dwordx4 v{dv+n}, {sr(srd)}, s{soff} offen offset:{n*1024}{nt} lds",
                                tag="dma")], earliest=e + 1 + n * stride, alone=True))
    items.append(Item(adv(sWR), earliest=e + 1))
    for i in post:
        items.append(Item([i], earliest=e + 1))
    return items


def dma_items(kind, e=0, stride=1):
    def step(off):
        if not CFG.get("rot", True):
            return [salu(f"s_add_u32 s{off}, s{off}, {SLOT}")]
        return [salu(f"s_add_u32 s{sSO}, s{off}, {SLOT}"),
                salu(f"s_and_b32 s{sSO}, s{sSO}, 0x3ffff"),
                salu(f"s_and_b32 s{off}, s{off}, 0xfffc0000"),
                salu(f"s_or_b32 s{off}, s{off}, s{sSO}")]
    if kind == "K":
        return dma_tile(sK, DVKV, NT, [], sKO, step(sKO), e, stride)
    if kind == "V":
        return dma_tile(sV, DVKV, NT, [], sVO, step(sVO), e, stride)
    if kind[0] == "W":
        return dma_tile(sW, DVW, "", [], sWO, [salu(f"s_add_u32 s{sWO}, s{sWO}, s{kind[1]}")], e, stride)
    if kind[0] == "N":
        p = kind[1]
        if ORDER[p][0] == "X":
            return dma_tile(sX, DVX, "", [], sN + p, [], e, stride)
        return dma_tile(sW, DVW, "", [], sN + p, [], e, stride)
    if kind[0] == "QW":
        return dma_tile(sW, DVW, "", [salu(f"s_add_u32 s{sSO}, s{sWQB}, {kind[1]*262144}")], sSO, [], e, stride)
    if kind[0] == "QX":
        return dma_tile(sX, DVX, "", [salu(f"s_add_u32 s{sSO}, s{sXO}, {kind[2]*14336 + kind[1]*256}")], sSO, [], e, stride)
    raise ValueError(kind)


def dma_now(kind):
    out = []
    for n, it in enumerate(dma_items(kind)):
        out += it.ins
        if n == 0:
            out.append(salu("s_nop 0"))
    return out


def setup_next(ntype, nadv=1, save=()):
    out = []
    for k in range(nadv):
        out += adv(sRD)
        if k < len(save):
            out.append(salu(f"s_mov_b32 s{save[k]}, s{sRD}"))
    if ntype:
        base = sVAB if ntype == "V" else sKAB
        out += [salu(f"s_sub_u32 s{sDEL}, s{sRD}, s{base}"), salu(f"s_mov_b32 s{base}, s{sRD}")]
    return out


def addr_updates(ntype):
    regs = [VA + b for b in range(8)] if ntype == "V" else [KA + b for b in range(4)]
    return [valu(f"v_add_u32 v{r}, s{sDEL}, v{r}") for r in regs]


def split_scalar(seq):
    out, cur = [], []
    for i in seq:
        cur.append(i)
        if not (i.text.startswith("s_add_u32") or i.text.startswith("s_cmp")):
            out.append(cur); cur = []
    if cur:
        out.append(cur)
    return out


def phase(ctype, mfs, ntype, readahead=True, pre=(), dma=(), queues=(), keep=None, nvis=1, nadv=1, save=(),
          sync_lg=(), end_lg=(), setup=True, retarget=True, tail=(), dma_e=None, front=(), sect=None):
    pre = list(pre)
    np_ = len(pre)
    allm = pre + list(mfs)
    fv, fs = {}, {}
    def gap(G, k): return np_ + 3 * G + k
    def addv(g, ins): fv.setdefault(g, []).extend(ins)
    def adds(g, ins): fs.setdefault(g, []).extend(ins)
    for G in range(16):
        H = G + D
        if H < 16:
            addv(gap(G, 0), READS[ctype](H))
        elif readahead:
            addv(gap(G, 0), READS[ntype](H - 16))
        if G + 1 < 16:
            adds(gap(G, 2), [wait_lg(("f", G + 1))])
        elif readahead:
            adds(gap(G, 2), [wait_lg(("f", 0), *end_lg)])
        elif end_lg:
            adds(gap(G, 2), [wait_lg(*end_lg)])
    if readahead:
        g = gap(16 - D - 1, 2)
        if sync_lg:
            adds(g, [wait_lg(*sync_lg)])
        adds(g, (fine(sect, "pre") if not CFG.get("postonly") else []) + [wait_vm(("tiles", nvis)), salu("s_barrier")] + fine(sect, "post"))
    qs = []
    if setup:
        sc = split_scalar(setup_next(ntype if retarget else None, nadv, save))
        slots = [gap(G, k) for G in range(16) for k in range(2)]
        for n, chunk in enumerate(sc):
            adds(slots[n], chunk)
        ready = slots[len(sc) - 1] + 1
        if retarget:
            ups = addr_updates(ntype)
            if ntype == ctype:
                n = len(ups)
                for b, u in enumerate(ups):
                    G = (16 - n) + b - D
                    assert gap(G, 1) >= ready
                    addv(gap(G, 1), [u])
            else:
                qs.append([Item([u], earliest=ready) for u in ups])
    dq = []
    g0 = gap(1, 0) if dma_e is None else dma_e
    if dma:
        span = (len(allm) - 4 - g0) // len(dma)
        for n, kind in enumerate(dma):
            dq += dma_items(kind, g0 + n * span, max(1, min(span // 4, CFG.get("dstride", 99))))
    qlist = qs + [list(q) for q in front] + [dq] + [list(q) for q in queues]
    if keep is not None:
        qlist.append(keep)
    body, left = schedule(allm, fv, fs, qlist, drain=False)
    nk = len(qlist) - (1 if keep is not None else 0)
    for q in left[:nk]:
        for it in q:
            body += it.ins
    if keep is not None:
        keep[:] = left[-1]
        for it in keep:
            it.earliest = 0
    for n, i in enumerate(body):
        if isinstance(i, Ins) and i.kind == "wlg":
            for tg in i.need:
                if tg[0] == "x":
                    later = [j for j in body[n:] if isinstance(j, Ins) and j.kind == "ds" and j.tag == tg]
                    assert not later, ("x read issued after its wait", tg)
    ndrain = sum(len(it.ins) for q in left[:nk] for it in q)
    if CFG.get("verbose") and ndrain:
        print("   drained", ndrain, "instructions at the end of a", ctype, "phase")
    return body + list(tail)


def restart(ntype, nvis=1, extra_vm=(), pre_reads=(), lg=()):
    out = [wait_vm(("tiles", nvis), *extra_vm), salu("s_barrier")]
    out += list(pre_reads)
    for G in range(D):
        out += READS[ntype](G)
    out.append(wait_lg(("f", 0), *lg))
    return out


ntouch = [0]
def touch_items(e=0, cond_u0=False):
    if not CFG.get("touch", False):
        return []
    body = [vmem(f"buffer_load_dword a{A_DUMMY}, v{VTO}, {sr(sTS)}, s{sTO} offen{CFG.get('tnt','')}", tag="touch"),
            salu(f"s_add_u32 s{sTO}, s{sTO}, {SLOT}")]
    if cond_u0:
        k = ntouch[0]; ntouch[0] += 1
        return [Item([salu(f"s_cmp_eq_u32 s{sU}, 0"), salu(f"s_cbranch_scc0 L_nt{k}"),
                      Cond(body, lambda env: env["u"] == 0), label(f"L_nt{k}")], earliest=e, alone=True)]
    return [Item(body, earliest=e, alone=True)]


def x_read_items(j, qt, ss, e=0):
    items = [Item([valu(f"v_add_u32 v{T0}, s{sXS+qt}, v{XAP}")], earliest=e)]
    for s in ss:
        if 4 * j + s >= 14:
            continue
        if s:
            items.append(Item([valu(f"v_xor_b32 v{T0+1}, {s<<6}, v{T0}")], earliest=e))
        items.append(Item([ds(f"ds_read_b128 {ar(xfr(4*j+s, qt))}, v{T0+(1 if s else 0)}", tag=("x", 4 * j + s))], earliest=e))
    return items


def softmax_items(par, e0=0, e1=0):
    items = []
    pairs = [(kt, qt, h) for kt in range(2) for qt in range(3) for h in range(2)]
    prev = None
    for n, (kt, qt, h) in enumerate(pairs):
        t0 = E_BASE + 2 * (n % 4)
        s = sreg(par, kt, qt) + 2 * h
        e = e0 if kt == 0 else e1
        items.append(Item([trans(f"v_exp_f32 v{t0}, v{s}")], earliest=e))
        if prev:
            items.append(Item([prev], earliest=e))
        items.append(Item([trans(f"v_exp_f32 v{t0+1}, v{s+1}")], earliest=e))
        prev = valu(f"v_cvt_pk_bf16_f32 v{preg(par,qt)+2*kt+h}, v{t0}, v{t0+1}")
    acc = MISC
    k0 = [preg(par, qt) + j for qt in range(3) for j in range(2)]
    k1 = [preg(par, qt) + 2 + j for qt in range(3) for j in range(2)]
    items.append(Item([valu(f"v_or3_b32 v{acc}, v{k0[0]}, v{k0[1]}, v{k0[2]}")]))
    items.append(Item([prev]))
    items.append(Item([valu(f"v_or3_b32 v{acc}, v{acc}, v{k0[3]}, v{k0[4]}")]))
    items.append(Item([valu(f"v_or3_b32 v{acc}, v{acc}, v{k0[5]}, v{k1[0]}")]))
    items.append(Item([valu(f"v_or3_b32 v{acc}, v{acc}, v{k1[1]}, v{k1[2]}")]))
    items.append(Item([valu(f"v_or3_b32 v{acc}, v{acc}, v{k1[3]}, v{k1[4]}")]))
    items.append(Item([valu(f"v_or_b32 v{acc}, v{acc}, v{k1[5]}")]))
    items.append(Item([valu(f"v_and_b32 v{acc}, 0x40004000, v{acc}")]))
    items.append(Item([valu(f"v_cmp_ne_u32 vcc, 0, v{acc}")]))
    return items


stubs = []
def check(par):
    n = len(stubs)
    stubs.append((n, par))
    return [salu(f"s_cbranch_vccnz L_stub{n}"), label(f"L_back{n}")]


def rowmax(par, qt, m, t1):
    s0, s1 = sreg(par, 0, qt), sreg(par, 1, qt)
    return [valu(f"v_max3_f32 v{m}, v{s0}, v{s0+1}, v{s0+2}"),
            valu(f"v_max3_f32 v{m}, v{m}, v{s0+3}, v{s1}"),
            valu(f"v_max3_f32 v{m}, v{m}, v{s1+1}, v{s1+2}"),
            valu(f"v_max_f32 v{m}, v{m}, v{s1+3}"),
            valu(f"v_mov_b32 v{t1}, v{m}"),
            salu("s_nop 1"),
            valu(f"v_permlane32_swap_b32 v{m}, v{t1}"),
            salu("s_nop 1"),
            valu(f"v_max_f32 v{m}, v{m}, v{t1}"),
            valu(f"v_mov_b32 v{t1}, v{m}"),
            salu("s_nop 1"),
            valu(f"v_permlane16_swap_b32 v{m}, v{t1}"),
            salu("s_nop 1"),
            valu(f"v_max_f32 v{m}, v{m}, v{t1}")]


def init_max():
    out = [salu("s_nop 7")]
    chains = []
    for qt in range(3):
        m, t1 = E_BASE + 2 * qt, E_BASE + 2 * qt + 1
        c = [i for i in rowmax(0, qt, m, t1) if i.kind != "salu"]
        c.append(valu(f"v_add_f32 v{m}, s{sB}, v{m}"))
        chains.append(c)
    for n in range(len(chains[0])):
        for c in chains:
            out.append(c[n])
    for qt in range(3):
        m = E_BASE + 2 * qt
        for j in range(4):
            out.append(valu(f"v_sub_f32 v{NEGM+4*qt+j}, 0, v{m}"))
        for kt in range(2):
            for j in range(4):
                r = sreg(0, kt, qt) + j
                out.append(valu(f"v_sub_f32 v{r}, v{r}, v{m}"))
    out.append(salu("s_nop 1"))
    return out


def rare_path(par):
    out = [label(f"L_rare{par}"), salu("s_nop 15"), salu("s_nop 15")]
    m, t1, f = E_BASE, E_BASE + 1, E_BASE + 2
    for qt in range(3):
        out += rowmax(par, qt, m, t1)
        out.append(valu(f"v_add_f32 v{m}, s{sB}, v{m}"))
        out.append(valu(f"v_max_f32 v{m}, 0, v{m}"))
        for pp in (par, 1 - par):
            for kt in range(2):
                for j in range(4):
                    r = sreg(pp, kt, qt) + j
                    out.append(valu(f"v_sub_f32 v{r}, v{r}, v{m}"))
        for j in range(4):
            out.append(valu(f"v_sub_f32 v{NEGM+4*qt+j}, v{NEGM+4*qt+j}, v{m}"))
        out.append(valu(f"v_exp_f32_e64 v{f}, -v{m}"))
        out.append(salu("s_nop 1"))
        regs = [oacc(t, qt) + j for t in range(16) for j in range(4)] + [A_L + 4 * qt + j for j in range(4)]
        for r in regs:
            out.append(valu(f"v_accvgpr_read_b32 v{t1}, a{r}"))
            out.append(valu(f"v_mul_f32 v{t1}, v{f}, v{t1}"))
            out.append(valu(f"v_accvgpr_write_b32 a{r}, v{t1}"))
        for kt in range(2):
            for h in range(2):
                s = sreg(par, kt, qt) + 2 * h
                out.append(trans(f"v_exp_f32 v{E_BASE+3}, v{s}"))
                out.append(trans(f"v_exp_f32 v{E_BASE+4}, v{s+1}"))
                out.append(salu("s_nop 1"))
                out.append(valu(f"v_cvt_pk_bf16_f32 v{preg(par,qt)+2*kt+h}, v{E_BASE+3}, v{E_BASE+4}"))
    out += [salu("s_nop 7"), salu(f"s_setpc_b64 {sr(sRET,2)}")]
    return out


def q_convert():
    out = [salu("s_nop 7")]
    blocks = []
    for b in range(24):
        s = 8 * b
        d = 4 * b
        seq = [valu(f"v_pk_mul_f32 {vr(s+2*j,2)}, {vr(s+2*j,2)}, {sr(sSC,2)}") for j in range(4)]
        seq += [valu(f"v_cvt_pk_bf16_f32 v{d+j}, v{s+2*j}, v{s+2*j+1}") for j in range(4)]
        sw1 = [valu(f"v_permlane32_swap_b32 v{d}, v{d+2}"), valu(f"v_permlane32_swap_b32 v{d+1}, v{d+3}")]
        sw2 = [valu(f"v_permlane16_swap_b32 v{d}, v{d+2}"), valu(f"v_permlane16_swap_b32 v{d+1}, v{d+3}")]
        blocks.append((seq, sw1, sw2))
    for b in range(24):
        out += blocks[b][0]
        if b > 0:
            out += blocks[b - 1][1]
        if b > 1:
            out += blocks[b - 2][2]
    out += [salu("s_nop 1")] + blocks[23][1] + blocks[22][2] + [salu("s_nop 1")] + blocks[23][2]
    out.append(salu("s_nop 1"))
    return out


def o_convert(store):
    out = [salu("s_nop 7")]
    rc = [FB, FB + 2, FB + 4]
    for qt in range(3):
        out.append(valu(f"v_accvgpr_read_b32 v{rc[qt]}, a{A_L+4*qt}"))
    for qt in range(3):
        out.append(trans(f"v_rcp_f32 v{rc[qt]}, v{rc[qt]}"))
    out.append(salu("s_nop 0"))
    for qt in range(3):
        out.append(valu(f"v_mov_b32 v{rc[qt]+1}, v{rc[qt]}"))
    order = [(s, qt) for s in range(8) for qt in range(3)]
    if store:
        order = order[NKEEP:] + order[:NKEEP]
    for cnt, (s, qt) in enumerate(order):
        if True:
            n = 3 * s + qt
            tt = FB + 8 + 8 * (cnt % 3)
            a0, a1 = oacc(2 * s, qt), oacc(2 * s + 1, qt)
            d = 96 + (3 * s + qt) * 4
            out += [valu(f"v_accvgpr_read_b32 v{tt+j}, a{a0+j}") for j in range(4)]
            out += [valu(f"v_accvgpr_read_b32 v{tt+4+j}, a{a1+j}") for j in range(4)]
            out += [valu(f"v_pk_mul_f32 {vr(tt+2*j,2)}, {vr(tt+2*j,2)}, {vr(rc[qt],2)}") for j in range(4)]
            out += [valu(f"v_cvt_pk_bf16_f32 v{d+j}, v{tt+2*j}, v{tt+2*j+1}") for j in range(4)]
            if store and n < NKEEP:
                out += [valu(f"v_accvgpr_write_b32 a{A_KEEP+4*n+j}, v{d+j}") for j in range(4)]
            elif store:
                if n % 4 == 0 or n == NKEEP:
                    out.append(salu(f"s_add_u32 s{sT+2}, s{sSTO}, {(n//4)*4096}"))
                out.append(vmem(f"buffer_store_dwordx4 {vr(d)}, v{LN16}, {sr(sWS)}, s{sT+2} offen offset:{(n%4)*1024}{CFG.get('stf','')}", tag="st"))
    out.append(salu("s_nop 1"))
    return out


nskip = [0]
def stash_store_item(n, e):
    k = nskip[0]; nskip[0] += 1
    body = [salu(f"s_add_u32 s{sT+2}, s{sSTO}, {n*1024}"),
            vmem(f"buffer_store_dwordx4 {ar(A_OF+4*n)}, v{LN16}, {sr(sWS)}, s{sT+2} offen", tag="st")]
    return Item([salu(f"s_cbranch_vccz L_skip{k}"), Cond(body, lambda env: env["u"] == 1), label(f"L_skip{k}")],
                earliest=e, alone=True)


def o0_load_items(e):
    items = []
    for n in range(NKEEP, 24):
        if n % 4 == 0 or n == NKEEP:
            items.append(Item([salu(f"s_add_u32 s{sT+2}, s{sSTO}, {(n//4)*4096}")], earliest=e))
        items.append(Item([vmem(f"buffer_load_dwordx4 {vr(4*n)}, v{LN16}, {sr(sWS)}, s{sT+2} offen offset:{(n%4)*1024}",
                                tag="o0")], earliest=e, alone=True))
    return items


def pat_wq():
    t, u = T0, T0 + 1
    out = [valu(f"v_lshrrev_b32 v{t}, 5, v{VL}"),
           valu(f"v_and_b32 v{u}, 31, v{VL}"),
           valu(f"v_lshlrev_b32 v{t+2}, 1, v{t}"),
           valu(f"v_xor_b32 v{u}, v{u}, v{t+2}"),
           valu(f"v_lshlrev_b32 v{u}, 4, v{u}"),
           valu(f"v_lshlrev_b32 v{t}, 13, v{t}"),
           salu(f"s_and_b32 s{sT}, s{sWV}, 1"),
           salu(f"s_lshl_b32 s{sT}, s{sT}, 17"),
           salu(f"s_lshr_b32 s{sT+1}, s{sWV}, 1"),
           salu(f"s_lshl_b32 s{sT+1}, s{sT+1}, 15"),
           salu(f"s_add_u32 s{sT}, s{sT}, s{sT+1}"),
           valu(f"v_add_u32 v{t}, s{sT}, v{t}")]
    for n in range(4):
        kn = 8 * (n >> 1) + 2 * (n & 1)
        out.append(valu(f"v_xor_b32 v{DVW+n}, {n<<6}, v{u}"))
        out.append(valu(f"v_add_u32 v{DVW+n}, v{DVW+n}, v{t}"))
        if kn:
            out.append(valu(f"v_add_u32 v{DVW+n}, {kn*8192 - n*1024}, v{DVW+n}"))
    return out


def pat_x():
    t, u = T0, T0 + 1
    out = [valu(f"v_lshrrev_b32 v{t}, 4, v{VL}"),
           valu(f"v_and_b32 v{u}, 15, v{VL}"),
           valu(f"v_xor_b32 v{u}, v{u}, v{t}"),
           valu(f"v_lshlrev_b32 v{u}, 4, v{u}"),
           salu(f"s_mul_i32 s{sT}, s{sWV}, 48"),
           valu(f"v_add_u32 v{t}, s{sT}, v{t}"),
           valu(f"v_mul_u32_u24 v{t}, 896, v{t}")]
    for n in range(4):
        out.append(valu(f"v_xor_b32 v{DVX+n}, {n<<6}, v{u}"))
        out.append(valu(f"v_add_u32 v{DVX+n}, v{DVX+n}, v{t}"))
        if n:
            out.append(valu(f"v_add_u32 v{DVX+n}, {n*(4*896-1024)}, v{DVX+n}"))
    return out


def pat_wo():
    t, u = T0, T0 + 1
    out = [valu(f"v_lshrrev_b32 v{t}, 3, v{VL}"),
           salu(f"s_lshl_b32 s{sT}, s{sWV}, 5"),
           valu(f"v_add_u32 v{t}, s{sT}, v{t}"),
           valu(f"v_mul_u32_u24 v{t}, 896, v{t}"),
           valu(f"v_lshrrev_b32 v{u}, 4, v{VL}"),
           valu(f"v_lshlrev_b32 v{u}, 1, v{u}"),
           valu(f"v_and_b32 v{t+2}, 7, v{VL}"),
           valu(f"v_xor_b32 v{u}, v{u}, v{t+2}"),
           valu(f"v_lshlrev_b32 v{u}, 4, v{u}"),
           valu(f"v_add_u32 v{DVW}, v{t}, v{u}")]
    for n in range(1, 4):
        out.append(valu(f"v_add_u32 v{DVW+n}, {n*6144}, v{DVW}"))
    for n in range(4):
        out.append(valu(f"v_mov_b32 v{DVX+n}, v{DVW+n}"))
    return out


def pat_oa():
    t, u = T0, T0 + 1
    out = [valu(f"v_lshrrev_b32 v{t}, 2, v{VL}"),
           valu(f"v_lshrrev_b32 v{u}, 1, v{t}"),
           valu(f"v_and_b32 v{u}, 3, v{u}"),
           valu(f"v_lshlrev_b32 v{u}, 1, v{u}"),
           valu(f"v_bfe_u32 v{t+2}, v{VL}, 1, 1"),
           valu(f"v_xor_b32 v{u}, v{u}, v{t+2}"),
           valu(f"v_lshlrev_b32 v{u}, 4, v{u}"),
           valu(f"v_lshlrev_b32 v{t}, 7, v{t}"),
           valu(f"v_add_u32 v{t}, v{t}, v{u}"),
           valu(f"v_and_b32 v{u}, 1, v{VL}"),
           valu(f"v_lshlrev_b32 v{u}, 3, v{u}"),
           valu(f"v_add_u32 v{t}, v{t}, v{u}")]
    for n in range(4):
        out.append(valu(f"v_xor_b32 v{KA+n}, {n<<5}, v{t}"))
        out.append(valu(f"v_add_u32 v{KA+n}, s{sRD}, v{KA+n}"))
    out.append(salu(f"s_mov_b32 s{sKAB}, s{sRD}"))
    return out


def next_offsets_qp():
    out = []
    for p in range(8):
        t = ORDER[p]
        if t[0] == "X":
            out.append(salu(f"s_add_u32 s{sN+p}, s{sXO}, {t[2]*14336 + t[1]*256}"))
        else:
            out.append(salu(f"s_add_u32 s{sN+p}, s{sWQB}, {t[1]*262144}"))
    return out


def wo_off(w): return ((w >> 1) & 1) * 256 * 896 + (w & 1) * 128 * 896 + (w >> 2) * 128


def dump_regs(regs, kind, slot):
    out = [salu("s_nop 7"), salu("s_nop 7"),
           salu(f"s_lshl_b32 s{sT+2}, s2, 18"),
           salu(f"s_lshl_b32 s{sT+3}, s{sWV}, 16"),
           salu(f"s_add_u32 s{sT+2}, s{sT+2}, s{sT+3}"),
           salu(f"s_add_u32 s{sT+2}, s{sT+2}, {128<<20}")]
    for n, r in enumerate(regs):
        out.append(salu(f"s_add_u32 s{sT}, s{sT+2}, {(slot+n)*1024}"))
        rr = vr(r) if kind == "v" else ar(r)
        out.append(vmem(f"buffer_store_dwordx4 {rr}, v{LN16}, {sr(sWS)}, s{sT} offen", tag="dbg"))
    out.append(salu("s_nop 1"))
    return out


stamp_n = [0]
STAMPS = []
def stamp(name):
    if not CFG.get("prof"):
        return []
    n = stamp_n[0]; stamp_n[0] += 1
    STAMPS.append(name)
    return [raw("s_waitcnt lgkmcnt(0)"), raw("s_memtime s[84:85]"), raw("s_waitcnt lgkmcnt(0)"),
            raw(f"s_lshl_b32 s86, s{sU}, 4"), raw(f"s_add_u32 m0, s86, {n}"), raw("s_nop 3"),
            raw(f"v_writelane_b32 v{PROFV}, s84, m0")]


fine_n = [0]
FINE = []
def fine(section, name):
    if not CFG.get("fine") or CFG.get("fine") != section or fine_n[0] >= 47:
        return []
    k = fine_n[0]; fine_n[0] += 1
    FINE.append(name)
    cur, prev = 88 + 2 * (k & 3), 88 + 2 * ((k - 2) & 3)
    out = [salu(f"s_cmp_eq_u32 s{sU}, {CFG.get('sel', 1)}"), salu(f"s_cbranch_scc0 L_fine{k}")]
    if k > 1:
        out.append(salu(f"v_accvgpr_write_b32 a{208+k-2}, s{prev}"))
    out += [salu(f"s_memtime s[{cur}:{cur+1}]"), label(f"L_fine{k}")]
    return out


def fine_out():
    if not CFG.get("fine"):
        return []
    k = fine_n[0]
    out = [raw("s_waitcnt lgkmcnt(0)"), raw(f"v_accvgpr_write_b32 a{208+k-1}, s{88+2*((k-1)&3)}"),
           raw(f"v_accvgpr_write_b32 a{208+k-2}, s{88+2*((k-2)&3)}"), raw("s_nop 3")]
    for j in range(k):
        out += [raw(f"v_accvgpr_read_b32 v{T0}, a{208+j}"), raw("s_nop 1"), raw(f"v_readfirstlane_b32 s84, v{T0}"), raw("s_nop 3"),
                raw(f"v_writelane_b32 v{T0+1}, s84, {j}")]
    out += [raw(f"v_lshlrev_b32 v{T0}, 2, v{VL}"),
            raw(f"s_lshl_b32 s86, s2, 10"), raw(f"s_lshl_b32 s87, s{sWV}, 8"), raw("s_add_u32 s86, s86, s87"),
            raw(f"s_add_u32 s86, s86, {201<<20}"),
            raw(f"buffer_store_dword v{T0+1}, v{T0}, {sr(sWS)}, s86 offen")]
    return out


def prof_out():
    if not CFG.get("prof"):
        return []
    return [raw("s_waitcnt lgkmcnt(0)"), raw("s_memrealtime s[84:85]"), raw("s_waitcnt lgkmcnt(0)"), raw("s_nop 3"),
            raw(f"v_writelane_b32 v{PROFV}, s84, 41"),
            raw(f"v_lshlrev_b32 v{T0}, 2, v{VL}"),
            raw(f"s_lshl_b32 s86, s2, 10"), raw(f"s_lshl_b32 s87, s{sWV}, 8"), raw("s_add_u32 s86, s86, s87"),
            raw(f"s_add_u32 s86, s86, {200<<20}"),
            raw(f"buffer_store_dword v{PROFV}, v{T0}, {sr(sWS)}, s86 offen")]


def plan_qp():
    idxW = {t[1]: i for i, t in enumerate(ORDER) if t[0] == "W"}
    xstep = {}
    for i, t in enumerate(ORDER):
        if t[0] == "X":
            s = min(k for k in range(14) if idxW[k] >= i)
            assert t[1] == 0 or s < 4 * t[1], (t, s)
            xstep[i] = s
    cert = {}
    for i, t in enumerate(ORDER):
        cert[i] = t[1] + 1 if t[0] == "W" else xstep[i]
    issue = {}
    done = 8
    allt = ORDER + [("A", a) for a in range(8)]
    for ks in range(14):
        F = -1
        while F + 1 < NQ and cert[F + 1] <= ks - 1:
            F += 1
        lim = min(F + NSLOT, NQ + 7)
        if ks < 13:
            lim = min(lim, done + CFG.get("cap", 3) - 1)
        issue[ks] = list(range(done, lim + 1))
        done = max(done, lim + 1)
    assert done == NQ + 8, (done, NQ)
    return idxW, xstep, issue, allt


def rot_init():
    if not CFG.get("rot", True):
        return "s_nop 0"
    return f"""s_add_u32 s7, s6, s{sHEAD}
s_mul_i32 s7, s7, {CFG.get('rotm', 1)}
s_and_b32 s7, s7, 15
s_lshl_b32 s7, s7, 14
s_add_u32 s{sKO}, s{sKO}, s7"""


def decode():
    m = CFG.get("map", "d")
    if m == "d":
        return """s_and_b32 s3, s2, 7
s_lshr_b32 s6, s2, 3
s_lshr_b32 s53, s3, 2
s_and_b32 s3, s3, 3
s_lshl_b32 s3, s3, 1
s_lshr_b32 s7, s6, 4
s_add_u32 s3, s3, s7
s_and_b32 s6, s6, 15
s_mov_b32 s90, s6
s_mov_b32 s91, s7"""
    if m == "c":
        return """s_and_b32 s3, s2, 7
s_lshr_b32 s6, s2, 3
s_lshr_b32 s53, s3, 2
s_bfe_u32 s7, s3, 0x10001
s_and_b32 s3, s3, 1
s_lshl_b32 s3, s3, 3
s_lshl_b32 s7, s7, 2
s_lshr_b32 s54, s6, 3
s_add_u32 s7, s7, s54
s_and_b32 s6, s6, 7
s_mov_b32 s90, s6
s_mov_b32 s91, s54
s_add_u32 s6, s6, s3
s_mov_b32 s3, s7"""
    if m == "b":
        return """s_and_b32 s3, s2, 7
s_lshr_b32 s6, s2, 3
s_lshr_b32 s53, s3, 2
s_and_b32 s3, s3, 3
s_lshl_b32 s3, s3, 2
s_lshr_b32 s7, s6, 2
s_and_b32 s6, s6, 3
s_mov_b32 s90, s6
s_mov_b32 s91, s7
s_add_u32 s6, s6, s3
s_mov_b32 s3, s7"""


NB_G, NH_G = {"d": (16, 2), "c": (8, 4), "b": (4, 8)}[CFG.get("map", "d")]


def warm_patterns(kind):
    t0, t1, t2 = T0, T0 + 1, T0 + 2
    out = []
    if kind == "qp":
        rows = 448 // NB_G // 4
        out += [salu(f"s_lshl_b32 s{sT}, s{sBL}, 2"), salu(f"s_add_u32 s{sT}, s{sT}, s{sWV}"),
                salu(f"s_mul_i32 s{sT}, s{sT}, {rows}"),
                valu(f"v_lshrrev_b32 v{t0}, 2, v{VL}"),
                valu(f"v_min_u32 v{t0}, {rows-1}, v{t0}"),
                valu(f"v_add_u32 v{t0}, s{sT}, v{t0}"),
                valu(f"v_lshlrev_b32 v{t0}, 13, v{t0}"),
                valu(f"v_and_b32 v{t2}, 3, v{VL}"),
                valu(f"v_lshlrev_b32 v{t2}, 7, v{t2}"),
                valu(f"v_add_u32 v{t0}, v{t0}, v{t2}"),
                salu(f"s_mov_b32 s{sWM1}, s{sWQB}")]
        lines = 1344 // NH_G // 4
        out += [salu(f"s_lshl_b32 s{sT}, s{sHL}, 2"), salu(f"s_add_u32 s{sT}, s{sT}, s{sWV}"),
                salu(f"s_mul_i32 s{sT}, s{sT}, {lines*128}"),
                salu(f"s_add_u32 s{sWM2}, s{sXO}, s{sT}"),
                valu(f"v_lshlrev_b32 v{t1}, 7, v{VL}")]
    else:
        lines = 3584 // NB_G // 4
        out += [salu(f"s_lshl_b32 s{sT}, s{sBL}, 2"), salu(f"s_add_u32 s{sT}, s{sT}, s{sWV}"),
                salu(f"s_mul_i32 s{sT}, s{sT}, {lines*128}"),
                salu(f"s_mul_i32 s{sWM1}, s{sHEAD}, {256*896}"),
                salu(f"s_add_u32 s{sWM1}, s{sWM1}, s{sT}"),
                salu(f"s_add_u32 s{sWM2}, s{sWM1}, 8192"),
                valu(f"v_lshlrev_b32 v{t0}, 7, v{VL}"),
                valu(f"v_lshlrev_b32 v{t1}, 7, v{VL}")]
    return out


def warm_items(e=0, part=None):
    if not CFG.get("warm", True):
        return []
    n = max(-(-(1344 // NH_G // 4) // 64), -(-(3584 // NB_G // 4) // 64) - 1)
    if not CFG.get("xwarm", True):
        n = -(-(3584 // NB_G // 4) // 64) - 1
    if part is not None:
        if part == 0:
            return [Item([vmem(f"buffer_load_dword a{A_DUMMY}, v{T0}, {sr(sW)}, s{sWM1} offen", tag="touch")], earliest=e, alone=True)]
        if part <= n:
            return [Item([vmem(f"buffer_load_dword a{A_DUMMY+1}, v{T0+1}, {sr(sX)}, s{sWM2} offen", tag="touch")], earliest=e, alone=True),
                    Item([salu(f"s_add_u32 s{sWM2}, s{sWM2}, 8192")], earliest=e)]
        return []
    items = [Item([vmem(f"buffer_load_dword a{A_DUMMY}, v{T0}, {sr(sW)}, s{sWM1} offen", tag="touch")], earliest=e, alone=True)]
    for k in range(n):
        items.append(Item([vmem(f"buffer_load_dword a{A_DUMMY+1}, v{T0+1}, {sr(sX)}, s{sWM2} offen", tag="touch")],
                          earliest=e + 3 * (k + 1), alone=True))
        items.append(Item([salu(f"s_add_u32 s{sWM2}, s{sWM2}, 8192")], earliest=e))
    return items


def main_kernel():
    P = []
    c_scale = f2u(math.log2(math.e) / 16.0)
    pro = [raw(x) for x in f"""
s_cmp_ge_u32 s2, 256
s_cbranch_scc1 L_exit
s_load_dwordx16 s[64:79], s[0:1], 0
s_load_dwordx4 s[80:83], s[0:1], 64
s_load_dwordx2 s[4:5], s[0:1], 96
v_lshrrev_b32 v1, 6, v0
v_and_b32 v{VL}, 63, v0
v_readfirstlane_b32 s{sWV}, v1
{decode()}
s_lshl_b32 s{sHEAD}, s3, 1
s_lshl_b32 s{sWVOFF}, s{sWV}, 12
s_mul_i32 s{sXO}, s6, 172032
s_lshl_b32 s7, s6, 4
s_add_u32 s7, s7, s{sHEAD}
s_lshl_b32 s{sKO}, s7, 18
{rot_init()}
s_mov_b32 s{sVO}, s{sKO}
s_lshl_b32 s{sWQB}, s{sHEAD}, 9
s_mov_b32 s{sINCA}, {128*896}
s_mov_b32 s{sINCB}, {(128 - 3*128*896) & 0xffffffff:#x}
s_lshl_b32 s7, s53, 4
s_add_u32 s7, s7, s6
s_mov_b32 s92, s7
s_lshl_b32 s7, s7, 3
s_add_u32 s7, s7, s3
s_mul_i32 s{sPAO}, s7, 172032
s_mul_i32 s3, s{sWV}, 43008
s_add_u32 s{sPAO}, s{sPAO}, s3
s_mul_i32 s{sSTO}, s2, 98304
s_mul_i32 s3, s{sWV}, 24576
s_add_u32 s{sSTO}, s{sSTO}, s3
s_add_u32 s{sSTO}, s{sSTO}, {48<<20}
s_mov_b32 s{sSC}, {c_scale:#x}
s_mov_b32 s{sSC+1}, {c_scale:#x}
s_mov_b32 s{sB}, {f2u(CFG['B']):#x}
s_mov_b32 s{sWR}, 0
s_mov_b32 s{sRD}, 0
s_mov_b32 s{sVAB}, 0
s_mov_b32 s{sKAB}, 0
s_mov_b32 s{sU}, 0
""".strip().splitlines()]
    P += pro
    t, u = T0, T0 + 1
    P += pat_x() + pat_wq()
    P += [raw(x) for x in f"""
s_waitcnt lgkmcnt(0)
s_cmp_eq_u32 s53, 0
s_cselect_b32 s{sX}, s64, s74
s_cselect_b32 s{sX+1}, s65, s75
s_cselect_b32 s{sK}, s66, s76
s_cselect_b32 s{sK+1}, s67, s77
s_cselect_b32 s{sV}, s68, s78
s_cselect_b32 s{sV+1}, s69, s79
s_cselect_b32 s{sW}, s70, s80
s_cselect_b32 s{sW+1}, s71, s81
s_cselect_b32 s{sWOP}, s72, s82
s_cselect_b32 s{sWOP+1}, s73, s83
s_mov_b32 s{sX+2}, 2752512
s_mov_b32 s{sX+3}, 0x00020000
s_mov_b32 s{sK+2}, 67108864
s_mov_b32 s{sK+3}, 0x00020000
s_mov_b32 s{sV+2}, 67108864
s_mov_b32 s{sV+3}, 0x00020000
s_mov_b32 s{sW+2}, 3670016
s_mov_b32 s{sW+3}, 0x00020000
s_mov_b32 s{sWS}, s4
s_mov_b32 s{sWS+1}, s5
s_mov_b32 s{sWS+2}, 288620544
s_mov_b32 s{sWS+3}, 0x00020000
""".strip().splitlines()]
    P += [raw(f"s_mov_b32 s{sBL}, s90"), raw(f"s_mov_b32 s{sHL}, s91"), raw(f"s_mov_b32 s{sGRP}, s92")]
    P += [raw(f"s_cmp_lt_u32 s{sWV}, 2"),
          raw(f"s_cselect_b32 s{sTS}, s{sK}, s{sV}"), raw(f"s_cselect_b32 s{sTS+1}, s{sK+1}, s{sV+1}"),
          raw(f"s_mov_b32 s{sTS+2}, 67108864"), raw(f"s_mov_b32 s{sTS+3}, 0x00020000"),
          raw(f"s_mov_b32 s{sTO}, s{sKO}"),
          raw(f"s_and_b32 s{sT}, s{sWV}, 1"), raw(f"s_lshl_b32 s{sT}, s{sT}, 13"),
          valu(f"v_lshlrev_b32 v{VTO}, 7, v{VL}"), valu(f"v_add_u32 v{VTO}, s{sT}, v{VTO}")]
    if CFG.get("cwarm", True):
        nblk = CFG.get("cblk", 10)
        P += [raw("s_getpc_b64 s[84:85]"), label("L_pc"),
              raw("s_and_b32 s84, s84, 0xffffff00"),
              raw("s_mov_b32 s86, L_codeend-L_pc"), raw("s_mov_b32 s87, 0x00020000"),
              raw("s_lshr_b32 s88, s2, 3"), raw("s_lshl_b32 s88, s88, 2"), raw(f"s_add_u32 s88, s88, s{sWV}"),
              raw(f"s_mul_hi_u32 s89, s88, {-(-(1<<32)//nblk)}"), raw(f"s_mul_i32 s89, s89, {nblk}"),
              raw("s_sub_u32 s88, s88, s89"), raw("s_lshl_b32 s88, s88, 13"),
              valu(f"v_lshlrev_b32 v{T0}, 7, v{VL}")]
        cw = [vmem(f"buffer_load_dword a{A_DUMMY+2}, v{T0}, s[84:87], s88 offen", tag="touch")]
    else:
        cw = []
    P += next_offsets_qp()
    for p in range(8):
        P += dma_now(("N", p))
        if p + 1 == CFG.get("pcw", 4):
            P += cw
        if p + 1 in CFG.get("ptouch", (4, 6, 8)):
            for it in touch_items():
                P += it.ins
        if p + 1 == CFG.get("pwarm", 4):
            P += warm_patterns("qp")
            for it in warm_items():
                P += it.ins
    P += [valu(f"v_lshrrev_b32 v{t}, 2, v{VL}"),
          valu(f"v_and_b32 v{u}, 7, v{t}"),
          valu(f"v_lshlrev_b32 v{u}, 1, v{u}"),
          valu(f"v_bfe_u32 v{t+2}, v{VL}, 1, 1"),
          valu(f"v_xor_b32 v{u}, v{u}, v{t+2}"),
          valu(f"v_lshlrev_b32 v{u}, 4, v{u}"),
          valu(f"v_lshlrev_b32 v{t}, 9, v{t}"),
          valu(f"v_add_u32 v{t}, v{t}, v{u}"),
          valu(f"v_and_b32 v{u}, 1, v{VL}"),
          valu(f"v_lshlrev_b32 v{u}, 3, v{u}"),
          valu(f"v_add_u32 v{t}, v{t}, v{u}")]
    P += [valu(f"v_xor_b32 v{VA+b}, {b<<5}, v{t}") for b in range(8)]
    P += [valu(f"v_and_b32 v{t}, 15, v{VL}"),
          valu(f"v_and_b32 v{u}, 7, v{t}"),
          valu(f"v_lshlrev_b32 v{u}, 1, v{u}"),
          valu(f"v_lshrrev_b32 v{t+2}, 4, v{VL}"),
          valu(f"v_xor_b32 v{u}, v{u}, v{t+2}"),
          valu(f"v_lshlrev_b32 v{u}, 4, v{u}"),
          valu(f"v_lshlrev_b32 v{t}, 9, v{t}"),
          valu(f"v_add_u32 v{t}, v{t}, v{u}")]
    P += [valu(f"v_xor_b32 v{KA+b}, {b<<6}, v{t}") for b in range(4)]
    P += [valu(f"v_lshrrev_b32 v{t}, 5, v{VL}"),
          valu(f"v_and_b32 v{u}, 31, v{VL}"),
          valu(f"v_lshlrev_b32 v{t+2}, 1, v{t}"),
          valu(f"v_xor_b32 v{u}, v{u}, v{t+2}"),
          valu(f"v_lshlrev_b32 v{u}, 4, v{u}"),
          valu(f"v_lshlrev_b32 v{t}, 9, v{t}"),
          valu(f"v_add_u32 v{t}, v{t}, v{u}"),
          valu(f"v_add_u32 v{t}, s{sWVOFF}, v{t}")]
    P += [valu(f"v_xor_b32 v{DVKV+n}, {n<<6}, v{t}") for n in range(4)]
    P += [valu(f"v_and_b32 v{t}, 15, v{VL}"),
          valu(f"v_lshrrev_b32 v{u}, 4, v{VL}"),
          valu(f"v_xor_b32 v{u}, v{u}, v{t}"),
          valu(f"v_lshlrev_b32 v{u}, 4, v{u}"),
          valu(f"v_lshlrev_b32 v{t}, 8, v{t}"),
          valu(f"v_add_u32 v{t}, v{t}, v{u}"),
          valu(f"v_add_u32 v{XAP}, s{sWVOFF}, v{t}"),
          valu(f"v_lshlrev_b32 v{LN16}, 4, v{VL}"),
          valu(f"v_mov_b32 v{t}, 0x3f803f80")]
    P += [valu(f"v_accvgpr_write_b32 a{A_ONES+j}, v{t}") for j in range(4)]
    if CFG.get("prof"):
        P += [raw(f"v_mov_b32 v{PROFV}, 0"), raw("s_memrealtime s[84:85]"), raw("s_waitcnt lgkmcnt(0)"), raw("s_nop 3"),
              raw(f"v_writelane_b32 v{PROFV}, s84, 40")]
    P += stamp("start")

    idxW, xstep, issue, allt = plan_qp()
    U = [label("L_unit")]
    U += stamp("unit")
    U += [salu(f"s_mov_b32 s{sXS}, s{sRD}")]
    sq = setup_next("V", nadv=idxW[0], save=[sXS + 1, sXS + 2])
    U += sq + addr_updates("V")
    pre_x = []
    for qt in range(3):
        pre_x += [i for it in x_read_items(0, qt, [0]) for i in it.ins]
    U += restart("V", nvis=idxW[0] + 1, pre_reads=pre_x, lg=[("x", 0)])
    U += stamp("qp_go")

    def dkind(i):
        tl = allt[i]
        if tl[0] == "W": return ("QW", tl[1])
        if tl[0] == "X": return ("QX", tl[1], tl[2])
        return ATT_ORDER[tl[1]]
    stash_n = 0
    xtiles_by_step = {}
    for i, s in xstep.items():
        xtiles_by_step.setdefault(s, []).append(ORDER[i])
    last_w_issue = max(ks for ks in range(14) if any(i < NQ for i in issue[ks]))
    last_w_issue = max(last_w_issue, max(xstep.values()))
    for ks in range(14):
        last = ks == 13
        q = []
        sync_lg = []
        xq = []
        for tl in xtiles_by_step.get(ks, []):
            ss = [1, 2, 3] if tl[1] == 0 else [0, 1, 2, 3]
            xq += x_read_items(tl[1], tl[2], ss)
        front = []
        if xq:
            front.append(xq)
            lastks = max(k for tl in xtiles_by_step[ks] for k in range(4 * tl[1], min(14, 4 * tl[1] + 4)))
            sync_lg = [("x", lastks)]
        if ks in CFG.get("qtouch", (8, 10, 12, 13)):
            q.append(touch_items(30 if ks == 13 else 20))
        if last:
            nadv, save = 1, ()
        else:
            nadv = idxW[ks + 1] - idxW[ks]
            save = [sXS + j for j in range(nadv - 1)]
        U += phase("V", mf_qp(ks), "K" if last else "V", readahead=not last, dma=[dkind(i) for i in issue[ks]],
                   queues=q, front=front, nvis=nadv, nadv=nadv, save=save, sync_lg=sync_lg,
                   end_lg=[("x", ks + 1)] if not last else (), sect="qp")
        if ks == last_w_issue:
            U += [raw(f"s_cmp_eq_u32 s{sU}, 0"), raw("s_cbranch_scc0 L_wsw1")]
            U.append(Cond([raw(f"s_add_u32 s{sWQB}, s{sWQB}, 512")] + next_offsets_qp() + warm_patterns("qp")
                          + [raw("s_branch L_wsw2")], lambda e: e["u"] == 0))
            U.append(label("L_wsw1"))
            sw = [raw(f"s_mov_b32 s{sW}, s{sWOP}"), raw(f"s_mov_b32 s{sW+1}, s{sWOP+1}"),
                  raw(f"s_mov_b32 s{sX}, s{sWOP}"), raw(f"s_mov_b32 s{sX+1}, s{sWOP+1}"),
                  raw(f"s_mov_b32 s{sX+2}, 3670016"),
                  raw(f"s_mul_i32 s{sWO}, s{sHEAD}, {256*896}")]
            sw += [raw(f"s_add_u32 s{sN+p}, s{sWO}, {wo_off(p)}") for p in range(8)]
            sw += [raw(f"s_add_u32 s{sWO}, s{sWO}, {wo_off(8)}")]
            U.append(Cond(sw + pat_wo() + warm_patterns("wo"), lambda e: e["u"] == 1))
            U.append(label("L_wsw2"))
    U += stamp("qp_end")
    U += q_convert()
    U += stamp("qconv_end")
    if CFG["dbg"] == "q":
        U += dump_regs([4 * b for b in range(24)], "v", 0)
    U += fine("att", "pre_restart")
    U += restart("K")
    U += fine("att", "post_restart")
    U += phase("K", mf_qk(0, zero_c=True), "K", dma=["V"], sect="att")
    U += fine("att", "a0_end")
    U += init_max()
    U += fine("att", "init_end")
    U += phase("K", mf_qk(1), "V", dma=["K"], queues=[softmax_items(0)], sect="att")

    def kind(a):
        p = a + 8
        if p >= 32:
            return ("N", p - 32)
        return ATT_ORDER[p]

    def iteration(i, first=False):
        par, np_ = i & 1, (i + 1) & 1
        sm = softmax_items(np_, e0=3, e1=3)
        pre, m = mf_pv(par, first)
        tq = []
        ws_ = CFG.get("wspread")
        if ws_ is not None and i in ws_:
            tq = [warm_items(12, part=ws_.index(i))]
        elif ws_ is None and i == CFG.get("iwarm", 9):
            tq = [warm_items(12)]
        elif i <= 8:
            tq = [touch_items(24)]
        elif i in CFG.get("ttouch", (10, 11, 12)):
            tq = [touch_items(24, cond_u0=True)]
        c_body = phase("V", m, "K", pre=pre, dma=[kind(2 * i + 2)], queues=tq, keep=sm, sect="att")
        a_body = phase("K", mf_qk(par), "V", dma=[kind(2 * i + 3)], queues=[sm], tail=check(np_), sect="att")
        return c_body + a_body

    U += iteration(0, first=True)
    if CFG.get("unroll"):
        for i in range(1, 9):
            U += iteration(i)
    else:
        lp = [label("L_att")] + iteration(1) + iteration(2)
        lp += [raw(f"s_sub_u32 s{sCNT}, s{sCNT}, 1"), raw(f"s_cmp_lg_u32 s{sCNT}, 0"), raw("s_cbranch_scc1 L_att")]
        U.append(raw(f"s_mov_b32 s{sCNT}, 4"))
        U.append(Loop(lp, 4))
    for i in range(9, 14):
        U += iteration(i)
    pre, m = mf_pv(0)
    U += phase("V", m, "V", pre=pre, dma=[kind(30)], queues=[softmax_items(1, e0=3, e1=3)], tail=check(1), sect="att")
    U += [raw(f"s_cmp_eq_u32 s{sU}, 0"), raw("s_cbranch_scc0 L_c15b")]
    pre, m = mf_pv(1)
    U.append(Cond(phase("V", m, "V", pre=pre, dma=[kind(31)], readahead=False, retarget=False)
                  + [raw("s_branch L_c15e")], lambda e: e["u"] == 0))
    U.append(label("L_c15b"))
    pre, m = mf_pv(1)
    U.append(Cond(phase("V", m, "V", pre=pre, dma=[kind(31)], readahead=False, retarget=False,
                        queues=[o0_load_items(3)]), lambda e: e["u"] == 1))
    U.append(label("L_c15e"))
    U += fine("att", "c15_end")
    if CFG.get("rot", True):
        U += [raw(f"s_add_u32 s{sKO}, s{sKO}, 0x40000"), raw(f"s_add_u32 s{sVO}, s{sVO}, 0x40000")]
    U += stamp("att_end")
    U += [raw(f"s_cmp_eq_u32 s{sU}, 1"), raw("s_cbranch_scc1 L_oc1")]
    U.append(Cond(o_convert(True) + stamp("oconv_end") + [raw(f"s_mov_b32 s{sU}, 1"), raw("s_branch L_unit")],
                  lambda e: e["u"] == 0))
    U.append(label("L_oc1"))
    U.append(Cond(o_convert(False) + (dump_regs([96 + 4 * b for b in range(24)], "v", 0) if CFG["dbg"] == "o" else [])
                  + stamp("oconv_end1"), lambda e: e["u"] == 1))
    P.append(Repeat(U, 2, "u"))

    P.append(label("L_p4"))
    P += pat_oa()
    P += restart("O", extra_vm=["o0"])
    P += stamp("p4_go")

    def epilogue_items(buf, spread):
        items = []
        n = 0
        for pair in range(2):
            for qt in range(3):
                e0 = spread[n]
                a0, a1 = pacc(buf, 2 * pair, qt), pacc(buf, 2 * pair + 1, qt)
                rd = VA
                items += [Item([valu(f"v_accvgpr_read_b32 v{rd+j}, a{a0+j}")], earliest=e0) for j in range(4)]
                items += [Item([valu(f"v_accvgpr_read_b32 v{rd+4+j}, a{a1+j}")], earliest=e0) for j in range(4)]
                o = T0 if n % 2 == 0 else DVKV
                items += [Item([valu(f"v_cvt_pk_bf16_f32 v{o+j}, v{rd+2*j}, v{rd+2*j+1}")], earliest=e0) for j in range(4)]
                items.append(Item([salu(f"s_add_u32 s{sT+1}, s{sPAO}, {n*1024}")], earliest=e0))
                items.append(Item([vmem(f"buffer_store_dwordx4 {vr(o)}, v{LN16}, {sr(sWS)}, s{sT+1} offen{CFG.get('pstf','')}",
                                        tag="pst")], earliest=e0, alone=True))
                n += 1
        items.append(Item([salu(f"s_add_u32 s{sPAO}, s{sPAO}, 6144")]))
        return items

    def chunk(buf, epi_prev, last=False, dma=True):
        out = []
        stream = epilogue_items(1 - buf, [6] * 6) if epi_prev else []
        cuts = [0, 21, 42, 63, len(stream)] if stream else [0] * 5
        for w in range(4):
            hd, f = w >> 1, w & 1
            winc = sINCB if w == 3 else sINCA
            is_last = last and w == 3
            part = stream[cuts[w]:cuts[w + 1]]
            out += phase("O", mf_op(buf, hd, f), "O", readahead=not is_last, dma=[("W", winc)] if dma else [],
                         queues=[part] if part else [], setup=not is_last, sect="p4")
        return out

    P += chunk(0, False)
    lp = [label("L_p4l")] + chunk(1, True) + chunk(0, True)
    lp += [raw(f"s_sub_u32 s{sCNT}, s{sCNT}, 1"), raw(f"s_cmp_lg_u32 s{sCNT}, 0"), raw("s_cbranch_scc1 L_p4l")]
    P.append(raw(f"s_mov_b32 s{sCNT}, 2"))
    P.append(Loop(lp, 2))
    P += chunk(1, True, dma=False)
    P += chunk(0, True, last=True, dma=False)
    P.append(salu("s_nop 7"))
    for it in epilogue_items(0, [0] * 6):
        P += it.ins
    P += stamp("p4_end")
    if CFG["fuse"]:
        P += fused_reduce()
    P.append(raw("s_waitcnt vmcnt(0)"))
    P += stamp("drained")
    P += prof_out()
    P += fine_out()
    P.append(raw("s_waitcnt vmcnt(0)"))
    P.append(label("L_exit"))
    P.append(raw("s_endpgm"))
    for n, par in stubs:
        P += [label(f"L_stub{n}"), raw(f"s_call_b64 {sr(sRET,2)}, L_rare{par}"), raw(f"s_branch L_back{n}")]
    R = rare_path(0) + rare_path(1) + [label("L_codeend")]
    return P, R


def fused_reduce():
    sDB, sOUT = 8, 12
    sG, sHP, sSB = 54, 55, 56
    L = []
    A = lambda t: L.append(raw(t))
    A("s_waitcnt vmcnt(0)")
    A("s_barrier")
    L.extend(stamp("st_drain"))
    A("s_load_dwordx2 s[8:9], s[0:1], 88")
    A("s_load_dwordx2 s[12:13], s[0:1], 80")
    A(f"s_lshr_b32 s{sHP}, s{sHEAD}, 1")
    A(f"s_mov_b32 s10, 256")
    A(f"s_mov_b32 s11, 0x00020000")
    A(f"s_mov_b32 s14, 5505024")
    A(f"s_mov_b32 s15, 0x00020000")
    A(f"v_mov_b32 v0, 1")
    A(f"s_lshl_b32 s57, s{sGRP}, 2")
    A(f"v_mov_b32 v1, s57")
    A("s_waitcnt lgkmcnt(0)")
    A(f"s_cmp_eq_u32 s{sWV}, 0")
    A("s_cbranch_scc0 L_nosig")
    A("s_mov_b64 s[58:59], exec")
    A("s_mov_b64 exec, 1")
    A("buffer_atomic_add v0, v1, s[8:11], 0 offen sc1")
    A("s_mov_b32 s57, 0")
    L.append(label("L_poll"))
    A("buffer_load_dword v2, v1, s[8:11], 0 offen sc1")
    A("s_waitcnt vmcnt(0)")
    A("v_readfirstlane_b32 s60, v2")
    A("s_add_u32 s57, s57, 1")
    A("s_cmp_ge_u32 s60, 8")
    A("s_cbranch_scc1 L_pollend")
    A("s_cmp_lt_u32 s57, 0x400000")
    A("s_cbranch_scc1 L_poll")
    L.append(label("L_pollend"))
    A("s_mov_b64 exec, s[58:59]")
    L.append(label("L_nosig"))
    A("s_barrier")
    L.extend(stamp("poll_ok"))
    A(f"s_mul_i32 s{sSB}, s{sGRP}, {8*172032}")
    A(f"s_mul_i32 s57, s{sHP}, 21")
    A(f"s_add_u32 s57, s57, s{sWV}")
    A(f"s_and_b32 s58, s{sGRP}, 15")
    A(f"s_lshr_b32 s59, s{sGRP}, 4")
    A("s_mul_i32 s58, s58, 192")
    A("s_mul_i32 s59, s59, 896")
    A(f"v_and_b32 v4, 15, v{VL}")
    A("v_mul_u32_u24 v4, 1792, v4")
    A(f"v_lshrrev_b32 v5, 4, v{VL}")
    A("v_lshlrev_b32 v5, 3, v5")
    A("v_add_u32 v4, v4, v5")
    def loads(k):
        A(f"s_add_u32 s60, s57, {4*k}")
        A("s_lshl_b32 s60, s60, 10")
        A(f"s_add_u32 s60, s60, s{sSB}")
        for j in range(8):
            r = 8 + 32 * k + 4 * j
            A(f"buffer_load_dwordx4 v[{r}:{r+3}], v{LN16}, {sr(sWS)}, s60 offen sc1")
            if j < 7:
                A("s_add_u32 s60, s60, 172032")
    def finish(k, pending):
        A(f"s_add_u32 s18, s57, {4*k}")
        A(f"s_mul_hi_u32 s21, s18, {-(-(1<<32)//42)}")
        A("s_mul_i32 s22, s21, 42")
        A("s_sub_u32 s22, s18, s22")
        A(f"s_mul_hi_u32 s23, s22, {-(-(1<<32)//6)}")
        A("s_mul_i32 s19, s23, 6")
        A("s_sub_u32 s19, s22, s19")
        A("s_cmp_ge_u32 s19, 3")
        A("s_cselect_b32 s20, 1, 0")
        A("s_mul_i32 s16, s20, 3")
        A("s_sub_u32 s16, s19, s16")
        A("s_mul_i32 s17, s21, 48")
        A("s_add_u32 s17, s17, s58")
        A("s_lshl_b32 s16, s16, 4")
        A("s_add_u32 s17, s17, s16")
        A("s_mul_i32 s17, s17, 1792")
        A("s_add_u32 s17, s17, s59")
        A("s_lshl_b32 s16, s23, 7")
        A("s_add_u32 s17, s17, s16")
        A("s_lshl_b32 s16, s20, 6")
        A("s_add_u32 s17, s17, s16")
        acc = 208
        for j in range(8):
            A(f"s_waitcnt vmcnt({pending + 7 - j})")
            for r in range(4):
                src = 8 + 32 * k + 4 * j + r
                if j == 0:
                    A(f"v_lshlrev_b32 v{acc+2*r}, 16, v{src}")
                    A(f"v_and_b32 v{acc+1+2*r}, 0xffff0000, v{src}")
                else:
                    A(f"v_lshlrev_b32 v6, 16, v{src}")
                    A(f"v_and_b32 v7, 0xffff0000, v{src}")
                    A(f"v_add_f32 v{acc+2*r}, v{acc+2*r}, v6")
                    A(f"v_add_f32 v{acc+1+2*r}, v{acc+1+2*r}, v7")
        o = 216 + 4 * (k & 1)
        for r in range(4):
            A(f"v_cvt_pk_bf16_f32 v{o+r}, v{acc+2*r}, v{acc+1+2*r}")
        A(f"buffer_store_dwordx2 v[{o}:{o+1}], v4, s[12:15], s17 offen")
        A(f"buffer_store_dwordx2 v[{o+2}:{o+3}], v4, s[12:15], s17 offen offset:32")
    for k in range(5):
        loads(k)
    A(f"s_cmp_eq_u32 s{sWV}, 0")
    A("s_cbranch_scc0 L_red5")
    loads(5)
    for k in range(6):
        finish(k, (5 - k) * 8 + 2 * k)
    A("s_branch L_redend")
    L.append(label("L_red5"))
    for k in range(5):
        finish(k, (4 - k) * 8 + 2 * k)
    L.append(label("L_redend"))
    return L


def reduce_kernel():
    L = f"""
s_cmp_ge_u32 s2, 1344
s_cbranch_scc1 L_rexit
s_load_dwordx2 s[4:5], s[0:1], 80
s_load_dwordx2 s[6:7], s[0:1], 96
v_lshrrev_b32 v1, 6, v0
v_and_b32 v2, 63, v0
v_readfirstlane_b32 s3, v1
s_lshl_b32 s16, s2, 2
s_add_u32 s16, s16, s3
s_mul_hi_u32 s17, s16, {-(-(1<<32)//168)}
s_mul_i32 s18, s17, 168
s_sub_u32 s18, s16, s18
s_waitcnt lgkmcnt(0)
s_mov_b32 s8, s6
s_mov_b32 s9, s7
s_mov_b32 s10, 288620544
s_mov_b32 s11, 0x00020000
s_mov_b32 s12, s4
s_mov_b32 s13, s5
s_mov_b32 s14, 5505024
s_mov_b32 s15, 0x00020000
s_mul_i32 s19, s17, {8*172032}
s_lshl_b32 s20, s18, 10
s_add_u32 s19, s19, s20
v_lshlrev_b32 v3, 4, v2
""".strip().splitlines()
    for j in range(8):
        L.append(f"buffer_load_dwordx4 v[{8+4*j}:{11+4*j}], v3, s[8:11], s19 offen")
        if j < 7:
            L.append("s_add_u32 s19, s19, 172032")
    L += f"""
s_mul_hi_u32 s21, s18, {-(-(1<<32)//42)}
s_mul_i32 s22, s21, 42
s_sub_u32 s22, s18, s22
s_mul_hi_u32 s23, s22, {-(-(1<<32)//6)}
s_mul_i32 s24, s23, 6
s_sub_u32 s24, s22, s24
s_cmp_ge_u32 s24, 3
s_cselect_b32 s25, 1, 0
s_mul_i32 s26, s25, 3
s_sub_u32 s26, s24, s26
s_and_b32 s27, s17, 15
s_lshr_b32 s28, s17, 4
s_mul_i32 s27, s27, 192
s_mul_i32 s29, s21, 48
s_add_u32 s27, s27, s29
s_lshl_b32 s29, s26, 4
s_add_u32 s27, s27, s29
s_mul_i32 s27, s27, 1792
s_mul_i32 s28, s28, 896
s_add_u32 s27, s27, s28
s_lshl_b32 s29, s23, 7
s_add_u32 s27, s27, s29
s_lshl_b32 s29, s25, 6
s_add_u32 s27, s27, s29
v_and_b32 v4, 15, v2
v_mul_u32_u24 v4, 1792, v4
v_lshrrev_b32 v5, 4, v2
v_lshlrev_b32 v5, 3, v5
v_add_u32 v4, v4, v5
""".strip().splitlines()
    for j in range(8):
        L.append(f"s_waitcnt vmcnt({7-j})")
        for r in range(4):
            src = 8 + 4 * j + r
            if j == 0:
                L.append(f"v_lshlrev_b32 v{40+2*r}, 16, v{src}")
                L.append(f"v_and_b32 v{41+2*r}, 0xffff0000, v{src}")
            else:
                L.append(f"v_lshlrev_b32 v6, 16, v{src}")
                L.append(f"v_and_b32 v7, 0xffff0000, v{src}")
                L.append(f"v_add_f32 v{40+2*r}, v{40+2*r}, v6")
                L.append(f"v_add_f32 v{41+2*r}, v{41+2*r}, v7")
    for r in range(4):
        L.append(f"v_cvt_pk_bf16_f32 v{48+r}, v{40+2*r}, v{41+2*r}")
    L += ["buffer_store_dwordx2 v[48:49], v4, s[12:15], s27 offen",
          "buffer_store_dwordx2 v[50:51], v4, s[12:15], s27 offen offset:32",
          "s_waitcnt vmcnt(0)"]
    return L


def build():
    P, R = main_kernel()
    prog = P + R
    info = solve_waits(P)

    def strip(items):
        out = []
        for it in flat(items):
            if isinstance(it, Ins):
                if CFG.get("nodma") and it.kind == "vmem" and it.tag == "dma": continue
                if CFG.get("nodma") and it.kind == "wvm": continue
                if CFG.get("nobar") and it.text == "s_barrier": continue
                if CFG.get("nolds") and it.kind in ("ds", "wlg"): continue
                if CFG.get("nost") and it.kind == "vmem" and it.tag in CFG["nost"]: continue
                if CFG.get("nochk") and it.text and it.text.startswith("s_cbranch_vccnz L_stub"): continue
                out.append(it)
            elif isinstance(it, (Loop, Repeat, Cond)):
                it.body = strip(it.body); out.append(it)
            else:
                out.append(it)
        return out
    prog = strip(prog)
    out = []
    fuse = CFG["fuse"]
    k1 = KF if fuse and not CFG.get("aslist") else K1
    if fuse and not CFG.get("aslist"):
        out.append(f"; @launch grid=(256,1,1) block=(256,1,1) lds=163840")
    else:
        out.append(f"; @launch kernel={k1} grid=(256,1,1) block=(256,1,1) lds=163840")
        if not fuse:
            out.append(f"; @launch kernel={K2} grid=(1344,1,1) block=(256,1,1) lds=0")
    out.append('.amdgcn_target "amdgcn-amd-amdhsa--gfx950"')
    out.append(".text")
    out += [f".globl {k1}", ".p2align 8", f".type {k1},@function", f"{k1}:"]
    emit(prog, out)
    kernels = [(k1, 512, 96, 256)]
    if not fuse:
        out += [f".globl {K2}", ".p2align 8", f".type {K2},@function", f"{K2}:"]
        out += ["    " + x for x in reduce_kernel()]
        out += ["L_rexit:", "    s_endpgm"]
        kernels.append((K2, 64, 40, 64))
    out.append('.section .rodata,"a"')
    for k, nv, ns, ao in kernels:
        out += [".p2align 6", f".amdhsa_kernel {k}",
                f"  .amdhsa_next_free_vgpr {nv}", f"  .amdhsa_next_free_sgpr {ns}", f"  .amdhsa_accum_offset {ao}",
                "  .amdhsa_group_segment_fixed_size 0", "  .amdhsa_kernarg_size 104",
                "  .amdhsa_user_sgpr_count 2", "  .amdhsa_user_sgpr_kernarg_segment_ptr 1",
                "  .amdhsa_system_sgpr_workgroup_id_x 1", ".end_amdhsa_kernel"]
    return "\n".join(out) + "\n", info


if __name__ == "__main__":
    txt, info = build()
    path = CFG.get("out", f"cdna_kernels/{NAME}.s")
    open(path, "w").write(txt)
    print("wrote", path, len(txt), "bytes", info, FINE)
    if CFG.get("plan"):
        print(plan_qp())
```

```python
class Ins:
    __slots__ = ("text", "kind", "tag", "need", "cost", "n", "note")

    def __init__(self, text, kind, tag=None, need=None, cost=1, note=None):
        self.text = text
        self.kind = kind
        self.tag = tag
        self.need = need
        self.cost = cost
        self.n = None
        self.note = note


def mfma(t): return Ins(t, "mfma")
def valu(t): return Ins(t, "valu")
def trans(t): return Ins(t, "trans", cost=2)
def salu(t): return Ins(t, "salu", cost=0)
def ds(t, tag=None): return Ins(t, "ds", tag=tag)
def vmem(t, tag=None): return Ins(t, "vmem", tag=tag, cost=4)
def label(t): return Ins(t + ":", "label", cost=0)
def raw(t): return Ins(t, "raw", cost=0)
def wait_vm(*need): return Ins(None, "wvm", need=list(need), cost=0)
def wait_lg(*need): return Ins(None, "wlg", need=list(need), cost=0)


class Loop:
    def __init__(self, body, trips):
        self.body = body
        self.trips = trips


class Cond:
    def __init__(self, body, pred, cost=4):
        self.body = body
        self.pred = pred
        self.cost = cost


class SetEnv:
    def __init__(self, fn):
        self.fn = fn


class Repeat:
    def __init__(self, body, trips, var):
        self.body = body
        self.trips = trips
        self.var = var


def flat(items):
    for it in items:
        if isinstance(it, (list, tuple)):
            yield from flat(it)
        elif it is not None:
            yield it


def trace(items, env):
    for it in flat(items):
        if isinstance(it, Ins):
            yield it
        elif isinstance(it, Loop):
            for _ in range(it.trips):
                yield from trace(it.body, env)
        elif isinstance(it, Repeat):
            for k in range(it.trips):
                env[it.var] = k
                yield from trace(it.body, env)
        elif isinstance(it, Cond):
            if it.pred(env):
                yield from trace(it.body, env)
        elif isinstance(it, SetEnv):
            it.fn(env)
        else:
            raise TypeError(it)


def solve_waits(prog, verbose=False):
    vmq = []
    lgq = []
    ndma = 0
    tile_last = {}
    ntilewait = 0
    env = {}
    for ins in trace(prog, env):
        if ins.kind == "vmem":
            vmq.append(ins.tag)
            if ins.tag == "dma":
                ndma += 1
                if ndma % 4 == 0:
                    tile_last[ndma // 4 - 1] = len(vmq) - 1
        elif ins.kind == "ds":
            lgq.append(ins.tag)
        elif ins.kind == "wvm":
            n = 63
            for t in ins.need:
                if t == "tile" or (isinstance(t, tuple) and t[0] == "tiles"):
                    ntilewait += 1 if t == "tile" else t[1]
                    k = ntilewait - 1
                    assert k in tile_last, f"tile {k} waited before issue"
                    idx = tile_last[k]
                elif t == "all":
                    idx = len(vmq) - 1
                elif isinstance(t, tuple) and t[0] == "opt":
                    idx = max((i for i in range(len(vmq) - 1, -1, -1) if vmq[i] == t[1]), default=None)
                    if idx is None:
                        continue
                else:
                    idx = max((i for i in range(len(vmq) - 1, -1, -1) if vmq[i] == t), default=None)
                    assert idx is not None, f"vm tag {t} never issued"
                n = min(n, len(vmq) - 1 - idx)
            ins.n = n if ins.n is None else min(ins.n, n)
        elif ins.kind == "wlg":
            n = 15
            for t in ins.need:
                if t == "all":
                    idx = len(lgq) - 1
                else:
                    idx = None
                    for i in range(len(lgq) - 1, -1, -1):
                        if lgq[i] == t:
                            idx = i
                            break
                    assert idx is not None, f"lgkm tag {t} never issued"
                n = min(n, len(lgq) - 1 - idx)
            ins.n = n if ins.n is None else min(ins.n, n)
    return dict(ndma=ndma, ntilewait=ntilewait)


def emit(items, out):
    for it in flat(items):
        if isinstance(it, Ins):
            if it.kind == "wvm":
                assert it.n is not None, "unvisited vm wait"
                out.append(f"    s_waitcnt vmcnt({it.n})")
            elif it.kind == "wlg":
                assert it.n is not None, "unvisited lgkm wait"
                out.append(f"    s_waitcnt lgkmcnt({it.n})")
            elif it.kind == "label":
                out.append(it.text)
            else:
                out.append("    " + it.text)
        elif isinstance(it, (Loop, Repeat, Cond)):
            emit(it.body, out)
        elif isinstance(it, SetEnv):
            pass
        else:
            raise TypeError(it)


class Item:
    __slots__ = ("ins", "earliest", "cost", "scalar", "alone")

    def __init__(self, ins, earliest=0, alone=False):
        self.ins = list(flat([ins]))
        self.earliest = earliest
        self.cost = sum(i.cost for i in self.ins)
        self.scalar = all(i.cost == 0 for i in self.ins)
        self.alone = alone


def schedule(mfmas, fixed_vec, fixed_scal, queues, cap=2, drain=True):
    out = []
    queues = [list(q) for q in queues]
    for g, m in enumerate(mfmas):
        out.append(m)
        sc = list(fixed_scal.get(g, []))
        vec = list(fixed_vec.get(g, []))
        used = sum(i.cost for i in vec)
        nsc = len(sc)
        for q in queues:
            if q and q[0].scalar and q[0].earliest <= g and nsc == 0:
                it = q.pop(0)
                sc += it.ins
                nsc += len(it.ins)
        picked = []
        progress = True
        while progress and used < cap:
            progress = False
            for q in queues:
                if not q:
                    continue
                it = q[0]
                if it.earliest > g:
                    continue
                if it.scalar:
                    continue
                if it.alone and used > 0:
                    continue
                if (not it.alone) and used + it.cost > cap:
                    continue
                q.pop(0)
                picked += it.ins
                used += it.cost
                progress = True
                break
        out += sc + vec + picked
    if drain:
        for q in queues:
            for it in q:
                out += it.ins
            q.clear()
    return out, queues
```

```python
import sys, struct, math
from asmlib import *

NAME = "concat_heads__mha_block_cached__gqa_block_cached__near_ridge"
K1 = "attn_main_kernel"
KF = NAME + "_kernel"
K2 = "attn_reduce_kernel"

CFG = dict(D=4, nt=True, dbg=None, B=10.0, order="A", cap=3, fuse=True, pstf=" sc1", wspread=[0, 9, 10, 11], pipe=True)
for a in sys.argv[1:]:
    if "=" in a:
        k, v = a.split("=", 1)
        try:
            v = eval(v)
        except Exception:
            pass
        CFG[k] = v
D = CFG["D"]
NT = " nt" if CFG["nt"] else ""
SLOT = 16384
NSLOT = 10
RING = NSLOT * SLOT

FB = 192
VA = 224
KA = 232
DVKV = 236
DVW = 240
DVX = 244
VL = 248
XAP = 249
LN16 = 250
PROFV = 251
T0 = 252
S_BASE, P_BASE, E_BASE, NEGM, MISC = 96, 144, 168, 176, 188
A_L, A_ONES, A_OF = 192, 204, 96

sK, sV, sW, sX, sWS = 8, 12, 16, 20, 24
sRET = 28
sU, sCNT, sWVOFF, sWR, sRD, sVAB, sKAB = 30, 31, 32, 33, 34, 35, 36
sKO, sVO, sWO, sSC, sINCA, sINCB = 37, 38, 39, 40, 42, 43
sWOP, sXO, sSTO, sPAO, sHEAD, sDEL, sB, sWV = 44, 46, 47, 48, 49, 50, 51, 52
sT = 54
sXS = 60
sWQB = 63
sN = 64
sSO = 72
sGRP = 74
sCO = 75
sBL, sHL, sWM1, sWM2 = 81, 82, 83, 73


def vr(b, n=4): return f"v[{b}:{b+n-1}]"
def ar(b, n=4): return f"a[{b}:{b+n-1}]"
def sr(b, n=4): return f"s[{b}:{b+n-1}]"
def f2u(x): return struct.unpack("<I", struct.pack("<f", x))[0]


MF = "v_mfma_f32_16x16x32_bf16"
def fb(G): return FB + (G % 8) * 4


def qacc(t, qt): return 24 * (t >> 1) + 8 * qt + 4 * (t & 1)
def xfr(ks, qt): return (ks * 3 + qt) * 4
def qf(s, qt): return (s * 3 + qt) * 4
def sreg(par, kt, qt): return S_BASE + par * 24 + (kt * 3 + qt) * 4
def preg(par, qt): return P_BASE + par * 12 + qt * 4
def oacc(t, qt): return (t * 3 + qt) * 4
A_KEEP = 208
NKEEP = CFG.get("nkeep", 11)
A_DUMMY = 252
VTO = T0 + 3
sTS, sTO, sKBASE = 84, 80, 53
def of(hd, s, qt):
    b = s * 3 + qt
    if hd == 0 and b < NKEEP:
        return ar(A_KEEP + 4 * b)
    return vr(hd * 96 + b * 4)
def pacc(buf, nt_, qt): return buf * 48 + (nt_ * 3 + qt) * 4


def qp_order():
    X = lambda j: [("X", j, qt) for qt in range(3)]
    W = lambda a, b: [("W", k) for k in range(a, b)]
    if CFG["order"] == "A":
        return X(0) + W(0, 2) + X(1) + W(2, 4) + X(2) + W(4, 6) + X(3) + W(6, 14)
    if CFG["order"] == "B":
        return X(0) + W(0, 2) + X(1) + W(2, 6) + X(2) + W(6, 10) + X(3) + W(10, 14)
    if CFG["order"] == "C":
        return X(0) + W(0, 2) + X(1) + W(2, 5) + X(2) + W(5, 8) + X(3) + W(8, 14)
ORDER = qp_order()
NQ = len(ORDER)
ATT_ORDER = ["K", "K"] + ["V", "K"] * 14 + ["V", "V"]
assert len(ATT_ORDER) == 32


def reads_v(G):
    a, b = G >> 3, G & 7
    f = fb(G)
    return [ds(f"ds_read_b64_tr_b16 {vr(f,2)}, v{VA+b} offset:{a*256}", tag=("f", G)),
            ds(f"ds_read_b64_tr_b16 {vr(f+2,2)}, v{VA+b} offset:{8192+a*256}", tag=("f", G))]


def reads_k(G):
    kt, s = G >> 3, G & 7
    f = fb(G)
    return [ds(f"ds_read_b128 {vr(f)}, v{KA+(s&3)} offset:{kt*8192+(s>>2)*256}", tag=("f", G))]


def reads_o(G):
    s2, nt_ = G >> 2, G & 3
    f = fb(G)
    return [ds(f"ds_read_b64_tr_b16 {vr(f,2)}, v{KA+nt_} offset:{s2*4096}", tag=("f", G)),
            ds(f"ds_read_b64_tr_b16 {vr(f+2,2)}, v{KA+nt_} offset:{s2*4096+2048}", tag=("f", G))]


READS = dict(V=reads_v, K=reads_k, O=reads_o)


def mf_qp(ks):
    out = []
    for t in range(16):
        for qt in range(3):
            d = qacc(t, qt)
            c = "0" if ks == 0 else vr(d)
            out.append(mfma(f"{MF} {vr(d)}, {vr(fb(t))}, {ar(xfr(ks,qt))}, {c}"))
    return out


def mf_qk(par, zero_c=False):
    out = []
    for G in range(16):
        kt, s = G >> 3, G & 7
        for qt in range(3):
            d = sreg(par, kt, qt)
            if s == 0:
                c = "0" if zero_c else vr(NEGM + 4 * qt)
            else:
                c = vr(d)
            out.append(mfma(f"{MF} {vr(d)}, {vr(fb(G))}, {vr(qf(s,qt))}, {c}"))
    return out


def mf_pv(par, first=False):
    pre = []
    for qt in range(3):
        d = A_L + 4 * qt
        c = "0" if first else ar(d)
        pre.append(mfma(f"{MF} {ar(d)}, {ar(A_ONES)}, {vr(preg(par,qt))}, {c}"))
    out = []
    for t in range(16):
        for qt in range(3):
            d = oacc(t, qt)
            c = "0" if first else ar(d)
            out.append(mfma(f"{MF} {ar(d)}, {vr(fb(t))}, {vr(preg(par,qt))}, {c}"))
    return pre, out


def mf_op(buf, hd, f):
    out = []
    for G in range(16):
        s2, nt_ = G >> 2, G & 3
        for qt in range(3):
            d = pacc(buf, nt_, qt)
            c = "0" if (hd == 0 and f == 0 and s2 == 0) else ar(d)
            out.append(mfma(f"{MF} {ar(d)}, {vr(fb(G))}, {of(hd, 4*f+s2, qt)}, {c}"))
    return out


def adv(reg, dst=None):
    dst = reg if dst is None else dst
    return [salu(f"s_add_u32 s{dst}, s{reg}, {SLOT}"),
            salu(f"s_cmp_eq_u32 s{dst}, {RING}"),
            salu(f"s_cselect_b32 s{dst}, 0, s{dst}")]


def dma_tile(srd, dv, nt, pre, soff, post, e, stride=1):
    items = [Item([salu(f"s_add_u32 m0, s{sWR}, s{sWVOFF}")] + pre, earliest=e)]
    for n in range(4):
        items.append(Item([vmem(f"buffer_load_dwordx4 v{dv+n}, {sr(srd)}, s{soff} offen offset:{n*1024}{nt} lds",
                                tag="dma")], earliest=e + 1 + n * stride, alone=True))
    items.append(Item(adv(sWR), earliest=e + 1))
    for i in post:
        items.append(Item([i], earliest=e + 1))
    return items


def dma_items(kind, e=0, stride=1):
    def step(off):
        if not CFG.get("rot", False):
            return [salu(f"s_add_u32 s{off}, s{off}, {SLOT}")]
        return [salu(f"s_add_u32 s{sSO}, s{off}, {SLOT}"),
                salu(f"s_and_b32 s{sSO}, s{sSO}, 0x3ffff"),
                salu(f"s_and_b32 s{off}, s{off}, 0xfffc0000"),
                salu(f"s_or_b32 s{off}, s{off}, s{sSO}")]
    if kind == "K":
        return dma_tile(sK, DVKV, NT, [], sKO, step(sKO), e, stride)
    if kind == "V":
        return dma_tile(sV, DVKV, NT, [], sVO, step(sVO), e, stride)
    if kind[0] == "W":
        return dma_tile(sW, DVW, "", [], sWO, [salu(f"s_add_u32 s{sWO}, s{sWO}, s{kind[1]}")], e, stride)
    if kind[0] == "N":
        p = kind[1]
        if ORDER[p][0] == "X":
            return dma_tile(sX, DVX, "", [], sN + p, [], e, stride)
        return dma_tile(sW, DVW, "", [], sN + p, [], e, stride)
    if kind[0] == "QW":
        return dma_tile(sW, DVW, "", [salu(f"s_add_u32 s{sSO}, s{sWQB}, {kind[1]*262144}")], sSO, [], e, stride)
    if kind[0] == "QX":
        return dma_tile(sX, DVX, "", [salu(f"s_add_u32 s{sSO}, s{sXO}, {kind[2]*14336 + kind[1]*256}")], sSO, [], e, stride)
    raise ValueError(kind)


def dma_now(kind):
    out = []
    for n, it in enumerate(dma_items(kind)):
        out += it.ins
        if n == 0:
            out.append(salu("s_nop 0"))
    return out


def setup_next(ntype, nadv=1, save=()):
    out = []
    for k in range(nadv):
        out += adv(sRD)
        if k < len(save):
            out.append(salu(f"s_mov_b32 s{save[k]}, s{sRD}"))
    if ntype:
        base = sVAB if ntype == "V" else sKAB
        out += [salu(f"s_sub_u32 s{sDEL}, s{sRD}, s{base}"), salu(f"s_mov_b32 s{base}, s{sRD}")]
    return out


def addr_updates(ntype):
    regs = [VA + b for b in range(8)] if ntype == "V" else [KA + b for b in range(4)]
    return [valu(f"v_add_u32 v{r}, s{sDEL}, v{r}") for r in regs]


def split_scalar(seq):
    out, cur = [], []
    for i in seq:
        cur.append(i)
        if not (i.text.startswith("s_add_u32") or i.text.startswith("s_cmp")):
            out.append(cur); cur = []
    if cur:
        out.append(cur)
    return out


def phase(ctype, mfs, ntype, readahead=True, pre=(), dma=(), queues=(), keep=None, nvis=1, nadv=1, save=(),
          sync_lg=(), end_lg=(), setup=True, retarget=True, tail=(), dma_e=None, front=(), sect=None, sync_vm=(), post_sync=(), pre_bar=()):
    pre = list(pre)
    np_ = len(pre)
    allm = pre + list(mfs)
    fv, fs = {}, {}
    def gap(G, k): return np_ + 3 * G + k
    def addv(g, ins): fv.setdefault(g, []).extend(ins)
    def adds(g, ins): fs.setdefault(g, []).extend(ins)
    for G in range(16):
        H = G + D
        if H < 16:
            addv(gap(G, 0), READS[ctype](H))
        elif readahead:
            addv(gap(G, 0), READS[ntype](H - 16))
        if G + 1 < 16:
            adds(gap(G, 2), [wait_lg(("f", G + 1))])
        elif readahead:
            adds(gap(G, 2), [wait_lg(("f", 0), *end_lg)])
        elif end_lg:
            adds(gap(G, 2), [wait_lg(*end_lg)])
    if readahead:
        g = gap(16 - D - 1, 2)
        if sync_lg:
            adds(g, [wait_lg(*sync_lg)])
        adds(g, (fine(sect, "pre") if not CFG.get("postonly") else []) + [wait_vm(("tiles", nvis), *sync_vm)] + list(pre_bar) + [salu("s_barrier")] + fine(sect, "post"))
        if post_sync:
            sc_ = [i for i in post_sync if i.cost == 0]
            adds(g, sc_)
            for n_, i in enumerate([i for i in post_sync if i.cost > 0]):
                addv(g + 2 + 3 * n_, [i])
    qs = []
    if setup:
        sc = split_scalar(setup_next(ntype if retarget else None, nadv, save))
        slots = [gap(G, k) for G in range(16) for k in range(2)]
        for n, chunk in enumerate(sc):
            adds(slots[n], chunk)
        ready = slots[len(sc) - 1] + 1
        if retarget:
            ups = addr_updates(ntype)
            if ntype == ctype:
                n = len(ups)
                for b, u in enumerate(ups):
                    G = (16 - n) + b - D
                    assert gap(G, 1) >= ready
                    addv(gap(G, 1), [u])
            else:
                qs.append([Item([u], earliest=ready) for u in ups])
    dq = []
    g0 = gap(1, 0) if dma_e is None else dma_e
    if dma:
        span = (len(allm) - 4 - g0) // len(dma)
        for n, kind in enumerate(dma):
            dq += dma_items(kind, g0 + n * span, max(1, min(span // 4, CFG.get("dstride", 99))))
    qlist = qs + [list(q) for q in front] + [dq] + [list(q) for q in queues]
    if keep is not None:
        qlist.append(keep)
    body, left = schedule(allm, fv, fs, qlist, drain=False)
    nk = len(qlist) - (1 if keep is not None else 0)
    for q in left[:nk]:
        for it in q:
            body += it.ins
    if keep is not None:
        keep[:] = left[-1]
        for it in keep:
            it.earliest = 0
    for n, i in enumerate(body):
        if isinstance(i, Ins) and i.kind == "wlg":
            for tg in i.need:
                if tg[0] == "x":
                    later = [j for j in body[n:] if isinstance(j, Ins) and j.kind == "ds" and j.tag == tg]
                    assert not later, ("x read issued after its wait", tg)
    ndrain = sum(len(it.ins) for q in left[:nk] for it in q)
    if CFG.get("verbose") and ndrain:
        print("   drained", ndrain, "instructions at the end of a", ctype, "phase")
    return body + list(tail)


def restart(ntype, nvis=1, extra_vm=(), pre_reads=(), lg=()):
    out = [wait_vm(("tiles", nvis), *extra_vm), salu("s_barrier")]
    out += list(pre_reads)
    for G in range(D):
        out += READS[ntype](G)
    out.append(wait_lg(("f", 0), *lg))
    return out


ntouch = [0]
def touch_items(e=0, cond_u0=False):
    if not CFG.get("touch", False):
        return []
    body = [vmem(f"buffer_load_dword a{A_DUMMY}, v{VTO}, {sr(sTS)}, s{sTO} offen{CFG.get('tnt','')}", tag="touch"),
            salu(f"s_add_u32 s{sTO}, s{sTO}, {SLOT}")]
    if cond_u0:
        k = ntouch[0]; ntouch[0] += 1
        return [Item([salu(f"s_cmp_eq_u32 s{sU}, 0"), salu(f"s_cbranch_scc0 L_nt{k}"),
                      Cond(body, lambda env: env["u"] == 0), label(f"L_nt{k}")], earliest=e, alone=True)]
    return [Item(body, earliest=e, alone=True)]


def x_read_items(j, qt, ss, e=0):
    items = [Item([valu(f"v_add_u32 v{T0}, s{sXS+qt}, v{XAP}")], earliest=e)]
    for s in ss:
        if 4 * j + s >= 14:
            continue
        if s:
            items.append(Item([valu(f"v_xor_b32 v{T0+1}, {s<<6}, v{T0}")], earliest=e))
        items.append(Item([ds(f"ds_read_b128 {ar(xfr(4*j+s, qt))}, v{T0+(1 if s else 0)}", tag=("x", 4 * j + s))], earliest=e))
    return items


def softmax_items(par, e0=0, e1=0):
    items = []
    pairs = [(kt, qt, h) for kt in range(2) for qt in range(3) for h in range(2)]
    prev = None
    for n, (kt, qt, h) in enumerate(pairs):
        t0 = E_BASE + 2 * (n % 4)
        s = sreg(par, kt, qt) + 2 * h
        e = e0 if kt == 0 else e1
        items.append(Item([trans(f"v_exp_f32 v{t0}, v{s}")], earliest=e))
        if prev:
            items.append(Item([prev], earliest=e))
        items.append(Item([trans(f"v_exp_f32 v{t0+1}, v{s+1}")], earliest=e))
        prev = valu(f"v_cvt_pk_bf16_f32 v{preg(par,qt)+2*kt+h}, v{t0}, v{t0+1}")
    acc = MISC
    k0 = [preg(par, qt) + j for qt in range(3) for j in range(2)]
    k1 = [preg(par, qt) + 2 + j for qt in range(3) for j in range(2)]
    items.append(Item([valu(f"v_or3_b32 v{acc}, v{k0[0]}, v{k0[1]}, v{k0[2]}")]))
    items.append(Item([prev]))
    items.append(Item([valu(f"v_or3_b32 v{acc}, v{acc}, v{k0[3]}, v{k0[4]}")]))
    items.append(Item([valu(f"v_or3_b32 v{acc}, v{acc}, v{k0[5]}, v{k1[0]}")]))
    items.append(Item([valu(f"v_or3_b32 v{acc}, v{acc}, v{k1[1]}, v{k1[2]}")]))
    items.append(Item([valu(f"v_or3_b32 v{acc}, v{acc}, v{k1[3]}, v{k1[4]}")]))
    items.append(Item([valu(f"v_or_b32 v{acc}, v{acc}, v{k1[5]}")]))
    items.append(Item([valu(f"v_and_b32 v{acc}, 0x40004000, v{acc}")]))
    items.append(Item([valu(f"v_cmp_ne_u32 vcc, 0, v{acc}")]))
    return items


stubs = []
def check(par):
    n = len(stubs)
    stubs.append((n, par))
    return [salu(f"s_cbranch_vccnz L_stub{n}"), label(f"L_back{n}")]


def rowmax(par, qt, m, t1):
    s0, s1 = sreg(par, 0, qt), sreg(par, 1, qt)
    return [valu(f"v_max3_f32 v{m}, v{s0}, v{s0+1}, v{s0+2}"),
            valu(f"v_max3_f32 v{m}, v{m}, v{s0+3}, v{s1}"),
            valu(f"v_max3_f32 v{m}, v{m}, v{s1+1}, v{s1+2}"),
            valu(f"v_max_f32 v{m}, v{m}, v{s1+3}"),
            valu(f"v_mov_b32 v{t1}, v{m}"),
            salu("s_nop 1"),
            valu(f"v_permlane32_swap_b32 v{m}, v{t1}"),
            salu("s_nop 1"),
            valu(f"v_max_f32 v{m}, v{m}, v{t1}"),
            valu(f"v_mov_b32 v{t1}, v{m}"),
            salu("s_nop 1"),
            valu(f"v_permlane16_swap_b32 v{m}, v{t1}"),
            salu("s_nop 1"),
            valu(f"v_max_f32 v{m}, v{m}, v{t1}")]


def init_max():
    out = [salu("s_nop 7")]
    chains = []
    for qt in range(3):
        m, t1 = E_BASE + 2 * qt, E_BASE + 2 * qt + 1
        c = [i for i in rowmax(0, qt, m, t1) if i.kind != "salu"]
        c.append(valu(f"v_add_f32 v{m}, s{sB}, v{m}"))
        chains.append(c)
    for n in range(len(chains[0])):
        for c in chains:
            out.append(c[n])
    for qt in range(3):
        m = E_BASE + 2 * qt
        for j in range(4):
            out.append(valu(f"v_sub_f32 v{NEGM+4*qt+j}, 0, v{m}"))
        for kt in range(2):
            for j in range(4):
                r = sreg(0, kt, qt) + j
                out.append(valu(f"v_sub_f32 v{r}, v{r}, v{m}"))
    out.append(salu("s_nop 1"))
    return out


def rare_path(par):
    out = [label(f"L_rare{par}"), salu("s_nop 15"), salu("s_nop 15")]
    m, t1, f = E_BASE, E_BASE + 1, E_BASE + 2
    for qt in range(3):
        out += rowmax(par, qt, m, t1)
        out.append(valu(f"v_add_f32 v{m}, s{sB}, v{m}"))
        out.append(valu(f"v_max_f32 v{m}, 0, v{m}"))
        for pp in (par, 1 - par):
            for kt in range(2):
                for j in range(4):
                    r = sreg(pp, kt, qt) + j
                    out.append(valu(f"v_sub_f32 v{r}, v{r}, v{m}"))
        for j in range(4):
            out.append(valu(f"v_sub_f32 v{NEGM+4*qt+j}, v{NEGM+4*qt+j}, v{m}"))
        out.append(valu(f"v_exp_f32_e64 v{f}, -v{m}"))
        out.append(salu("s_nop 1"))
        regs = [oacc(t, qt) + j for t in range(16) for j in range(4)] + [A_L + 4 * qt + j for j in range(4)]
        for r in regs:
            out.append(valu(f"v_accvgpr_read_b32 v{t1}, a{r}"))
            out.append(valu(f"v_mul_f32 v{t1}, v{f}, v{t1}"))
            out.append(valu(f"v_accvgpr_write_b32 a{r}, v{t1}"))
        for kt in range(2):
            for h in range(2):
                s = sreg(par, kt, qt) + 2 * h
                out.append(trans(f"v_exp_f32 v{E_BASE+3}, v{s}"))
                out.append(trans(f"v_exp_f32 v{E_BASE+4}, v{s+1}"))
                out.append(salu("s_nop 1"))
                out.append(valu(f"v_cvt_pk_bf16_f32 v{preg(par,qt)+2*kt+h}, v{E_BASE+3}, v{E_BASE+4}"))
    out += [salu("s_nop 7"), salu(f"s_setpc_b64 {sr(sRET,2)}")]
    return out


def q_convert():
    out = [salu("s_nop 7")]
    blocks = []
    for b in range(24):
        s = 8 * b
        d = 4 * b
        seq = [valu(f"v_pk_mul_f32 {vr(s+2*j,2)}, {vr(s+2*j,2)}, {sr(sSC,2)}") for j in range(4)]
        seq += [valu(f"v_cvt_pk_bf16_f32 v{d+j}, v{s+2*j}, v{s+2*j+1}") for j in range(4)]
        sw1 = [valu(f"v_permlane32_swap_b32 v{d}, v{d+2}"), valu(f"v_permlane32_swap_b32 v{d+1}, v{d+3}")]
        sw2 = [valu(f"v_permlane16_swap_b32 v{d}, v{d+2}"), valu(f"v_permlane16_swap_b32 v{d+1}, v{d+3}")]
        blocks.append((seq, sw1, sw2))
    for b in range(24):
        out += blocks[b][0]
        if b > 0:
            out += blocks[b - 1][1]
        if b > 1:
            out += blocks[b - 2][2]
    out += [salu("s_nop 1")] + blocks[23][1] + blocks[22][2] + [salu("s_nop 1")] + blocks[23][2]
    out.append(salu("s_nop 1"))
    return out


def o_convert(store):
    out = [salu("s_nop 7")]
    rc = [FB, FB + 2, FB + 4]
    for qt in range(3):
        out.append(valu(f"v_accvgpr_read_b32 v{rc[qt]}, a{A_L+4*qt}"))
    for qt in range(3):
        out.append(trans(f"v_rcp_f32 v{rc[qt]}, v{rc[qt]}"))
    out.append(salu("s_nop 0"))
    for qt in range(3):
        out.append(valu(f"v_mov_b32 v{rc[qt]+1}, v{rc[qt]}"))
    order = [(s, qt) for s in range(8) for qt in range(3)]
    if store:
        order = order[NKEEP:] + order[:NKEEP]
    for cnt, (s, qt) in enumerate(order):
        if True:
            n = 3 * s + qt
            tt = FB + 8 + 8 * (cnt % 3)
            a0, a1 = oacc(2 * s, qt), oacc(2 * s + 1, qt)
            d = 96 + (3 * s + qt) * 4
            out += [valu(f"v_accvgpr_read_b32 v{tt+j}, a{a0+j}") for j in range(4)]
            out += [valu(f"v_accvgpr_read_b32 v{tt+4+j}, a{a1+j}") for j in range(4)]
            out += [valu(f"v_pk_mul_f32 {vr(tt+2*j,2)}, {vr(tt+2*j,2)}, {vr(rc[qt],2)}") for j in range(4)]
            out += [valu(f"v_cvt_pk_bf16_f32 v{d+j}, v{tt+2*j}, v{tt+2*j+1}") for j in range(4)]
            if store and n < NKEEP:
                out += [valu(f"v_accvgpr_write_b32 a{A_KEEP+4*n+j}, v{d+j}") for j in range(4)]
            elif store:
                if n % 4 == 0 or n == NKEEP:
                    out.append(salu(f"s_add_u32 s{sT+2}, s{sSTO}, {(n//4)*4096}"))
                out.append(vmem(f"buffer_store_dwordx4 {vr(d)}, v{LN16}, {sr(sWS)}, s{sT+2} offen offset:{(n%4)*1024}{CFG.get('stf','')}", tag="st"))
    out.append(salu("s_nop 1"))
    return out


nskip = [0]
def stash_store_item(n, e):
    k = nskip[0]; nskip[0] += 1
    body = [salu(f"s_add_u32 s{sT+2}, s{sSTO}, {n*1024}"),
            vmem(f"buffer_store_dwordx4 {ar(A_OF+4*n)}, v{LN16}, {sr(sWS)}, s{sT+2} offen", tag="st")]
    return Item([salu(f"s_cbranch_vccz L_skip{k}"), Cond(body, lambda env: env["u"] == 1), label(f"L_skip{k}")],
                earliest=e, alone=True)


def o0_load_items(e):
    items = []
    for n in range(NKEEP, 24):
        if n % 4 == 0 or n == NKEEP:
            items.append(Item([salu(f"s_add_u32 s{sT+2}, s{sSTO}, {(n//4)*4096}")], earliest=e))
        items.append(Item([vmem(f"buffer_load_dwordx4 {vr(4*n)}, v{LN16}, {sr(sWS)}, s{sT+2} offen offset:{(n%4)*1024}",
                                tag="o0")], earliest=e, alone=True))
    return items


def pat_wq():
    t, u = T0, T0 + 1
    out = [valu(f"v_lshrrev_b32 v{t}, 5, v{VL}"),
           valu(f"v_and_b32 v{u}, 31, v{VL}"),
           valu(f"v_lshlrev_b32 v{t+2}, 1, v{t}"),
           valu(f"v_xor_b32 v{u}, v{u}, v{t+2}"),
           valu(f"v_lshlrev_b32 v{u}, 4, v{u}"),
           valu(f"v_lshlrev_b32 v{t}, 13, v{t}"),
           salu(f"s_and_b32 s{sT}, s{sWV}, 1"),
           salu(f"s_lshl_b32 s{sT}, s{sT}, 17"),
           salu(f"s_lshr_b32 s{sT+1}, s{sWV}, 1"),
           salu(f"s_lshl_b32 s{sT+1}, s{sT+1}, 15"),
           salu(f"s_add_u32 s{sT}, s{sT}, s{sT+1}"),
           valu(f"v_add_u32 v{t}, s{sT}, v{t}")]
    for n in range(4):
        kn = 8 * (n >> 1) + 2 * (n & 1)
        out.append(valu(f"v_xor_b32 v{DVW+n}, {n<<6}, v{u}"))
        out.append(valu(f"v_add_u32 v{DVW+n}, v{DVW+n}, v{t}"))
        if kn:
            out.append(valu(f"v_add_u32 v{DVW+n}, {kn*8192 - n*1024}, v{DVW+n}"))
    return out


def pat_x():
    t, u = T0, T0 + 1
    out = [valu(f"v_lshrrev_b32 v{t}, 4, v{VL}"),
           valu(f"v_and_b32 v{u}, 15, v{VL}"),
           valu(f"v_xor_b32 v{u}, v{u}, v{t}"),
           valu(f"v_lshlrev_b32 v{u}, 4, v{u}"),
           salu(f"s_mul_i32 s{sT}, s{sWV}, 48"),
           valu(f"v_add_u32 v{t}, s{sT}, v{t}"),
           valu(f"v_mul_u32_u24 v{t}, 896, v{t}")]
    for n in range(4):
        out.append(valu(f"v_xor_b32 v{DVX+n}, {n<<6}, v{u}"))
        out.append(valu(f"v_add_u32 v{DVX+n}, v{DVX+n}, v{t}"))
        if n:
            out.append(valu(f"v_add_u32 v{DVX+n}, {n*(4*896-1024)}, v{DVX+n}"))
    return out


def pat_wo():
    t, u = T0, T0 + 1
    out = [valu(f"v_lshrrev_b32 v{t}, 3, v{VL}"),
           salu(f"s_lshl_b32 s{sT}, s{sWV}, 5"),
           valu(f"v_add_u32 v{t}, s{sT}, v{t}"),
           valu(f"v_mul_u32_u24 v{t}, 896, v{t}"),
           valu(f"v_lshrrev_b32 v{u}, 4, v{VL}"),
           valu(f"v_lshlrev_b32 v{u}, 1, v{u}"),
           valu(f"v_and_b32 v{t+2}, 7, v{VL}"),
           valu(f"v_xor_b32 v{u}, v{u}, v{t+2}"),
           valu(f"v_lshlrev_b32 v{u}, 4, v{u}"),
           valu(f"v_add_u32 v{DVW}, v{t}, v{u}")]
    for n in range(1, 4):
        out.append(valu(f"v_add_u32 v{DVW+n}, {n*6144}, v{DVW}"))
    for n in range(4):
        out.append(valu(f"v_mov_b32 v{DVX+n}, v{DVW+n}"))
    return out


def pat_oa():
    t, u = T0, T0 + 1
    out = [valu(f"v_lshrrev_b32 v{t}, 2, v{VL}"),
           valu(f"v_lshrrev_b32 v{u}, 1, v{t}"),
           valu(f"v_and_b32 v{u}, 3, v{u}"),
           valu(f"v_lshlrev_b32 v{u}, 1, v{u}"),
           valu(f"v_bfe_u32 v{t+2}, v{VL}, 1, 1"),
           valu(f"v_xor_b32 v{u}, v{u}, v{t+2}"),
           valu(f"v_lshlrev_b32 v{u}, 4, v{u}"),
           valu(f"v_lshlrev_b32 v{t}, 7, v{t}"),
           valu(f"v_add_u32 v{t}, v{t}, v{u}"),
           valu(f"v_and_b32 v{u}, 1, v{VL}"),
           valu(f"v_lshlrev_b32 v{u}, 3, v{u}"),
           valu(f"v_add_u32 v{t}, v{t}, v{u}")]
    for n in range(4):
        out.append(valu(f"v_xor_b32 v{KA+n}, {n<<5}, v{t}"))
        out.append(valu(f"v_add_u32 v{KA+n}, s{sRD}, v{KA+n}"))
    out.append(salu(f"s_mov_b32 s{sKAB}, s{sRD}"))
    return out


def next_offsets_qp():
    out = []
    for p in range(8):
        t = ORDER[p]
        if t[0] == "X":
            out.append(salu(f"s_add_u32 s{sN+p}, s{sXO}, {t[2]*14336 + t[1]*256}"))
        else:
            out.append(salu(f"s_add_u32 s{sN+p}, s{sWQB}, {t[1]*262144}"))
    return out


def wo_off(w): return ((w >> 1) & 1) * 256 * 896 + (w & 1) * 128 * 896 + (w >> 2) * 128


def dump_regs(regs, kind, slot):
    out = [salu("s_nop 7"), salu("s_nop 7"),
           salu(f"s_lshl_b32 s{sT+2}, s2, 18"),
           salu(f"s_lshl_b32 s{sT+3}, s{sWV}, 16"),
           salu(f"s_add_u32 s{sT+2}, s{sT+2}, s{sT+3}"),
           salu(f"s_add_u32 s{sT+2}, s{sT+2}, {128<<20}")]
    for n, r in enumerate(regs):
        out.append(salu(f"s_add_u32 s{sT}, s{sT+2}, {(slot+n)*1024}"))
        rr = vr(r) if kind == "v" else ar(r)
        out.append(vmem(f"buffer_store_dwordx4 {rr}, v{LN16}, {sr(sWS)}, s{sT} offen", tag="dbg"))
    out.append(salu("s_nop 1"))
    return out


stamp_n = [0]
STAMPS = []
def stamp(name):
    if not CFG.get("prof"):
        return []
    n = stamp_n[0]; stamp_n[0] += 1
    STAMPS.append(name)
    return [raw("s_waitcnt lgkmcnt(0)"), raw("s_memtime s[96:97]"), raw("s_waitcnt lgkmcnt(0)"),
            raw(f"s_lshl_b32 s98, s{sU}, 4"), raw(f"s_add_u32 m0, s98, {n}"), raw("s_nop 3"),
            raw(f"v_writelane_b32 v{PROFV}, s96, m0")]


fine_n = [0]
FINE = []
def fine(section, name):
    if not CFG.get("fine") or CFG.get("fine") != section or fine_n[0] >= 47:
        return []
    k = fine_n[0]; fine_n[0] += 1
    FINE.append(name)
    cur, prev = 88 + 2 * (k & 3), 88 + 2 * ((k - 2) & 3)
    out = [salu(f"s_cmp_eq_u32 s{sU}, {CFG.get('sel', 1)}"), salu(f"s_cbranch_scc0 L_fine{k}")]
    if k > 1:
        out.append(salu(f"v_accvgpr_write_b32 a{208+k-2}, s{prev}"))
    out += [salu(f"s_memtime s[{cur}:{cur+1}]"), label(f"L_fine{k}")]
    return out


def fine_out():
    if not CFG.get("fine"):
        return []
    k = fine_n[0]
    out = [raw("s_waitcnt lgkmcnt(0)"), raw(f"v_accvgpr_write_b32 a{208+k-1}, s{88+2*((k-1)&3)}"),
           raw(f"v_accvgpr_write_b32 a{208+k-2}, s{88+2*((k-2)&3)}"), raw("s_nop 3")]
    for j in range(k):
        out += [raw(f"v_accvgpr_read_b32 v{T0}, a{208+j}"), raw("s_nop 1"), raw(f"v_readfirstlane_b32 s84, v{T0}"), raw("s_nop 3"),
                raw(f"v_writelane_b32 v{T0+1}, s84, {j}")]
    out += [raw(f"v_lshlrev_b32 v{T0}, 2, v{VL}"),
            raw(f"s_lshl_b32 s86, s2, 10"), raw(f"s_lshl_b32 s87, s{sWV}, 8"), raw("s_add_u32 s86, s86, s87"),
            raw(f"s_add_u32 s86, s86, {201<<20}"),
            raw(f"buffer_store_dword v{T0+1}, v{T0}, {sr(sWS)}, s86 offen")]
    return out


def prof_out():
    if not CFG.get("prof"):
        return []
    return [raw("s_waitcnt lgkmcnt(0)"), raw("s_memrealtime s[96:97]"), raw("s_waitcnt lgkmcnt(0)"), raw("s_nop 3"),
            raw(f"v_writelane_b32 v{PROFV}, s96, 41"),
            raw(f"v_lshlrev_b32 v{T0}, 2, v{VL}"),
            raw(f"s_lshl_b32 s86, s2, 10"), raw(f"s_lshl_b32 s87, s{sWV}, 8"), raw("s_add_u32 s86, s86, s87"),
            raw(f"s_add_u32 s86, s86, {200<<20}"),
            raw(f"buffer_store_dword v{PROFV}, v{T0}, {sr(sWS)}, s86 offen")]


def plan_qp():
    idxW = {t[1]: i for i, t in enumerate(ORDER) if t[0] == "W"}
    xstep = {}
    for i, t in enumerate(ORDER):
        if t[0] == "X":
            s = min(k for k in range(14) if idxW[k] >= i)
            assert t[1] == 0 or s < 4 * t[1], (t, s)
            xstep[i] = s
    cert = {}
    for i, t in enumerate(ORDER):
        cert[i] = t[1] + 1 if t[0] == "W" else xstep[i]
    issue = {}
    done = 8
    allt = ORDER + [("A", a) for a in range(8)]
    for ks in range(14):
        F = -1
        while F + 1 < NQ and cert[F + 1] <= ks - 1:
            F += 1
        lim = min(F + NSLOT, NQ + 7)
        if ks < 13:
            lim = min(lim, done + CFG.get("cap", 3) - 1)
        issue[ks] = list(range(done, lim + 1))
        done = max(done, lim + 1)
    assert done == NQ + 8, (done, NQ)
    return idxW, xstep, issue, allt


def rot_init():
    if not CFG.get("rot", False):
        return "s_nop 0"
    return f"""s_add_u32 s7, s6, s{sHEAD}
s_mul_i32 s7, s7, {CFG.get('rotm', 1)}
s_and_b32 s7, s7, 15
s_lshl_b32 s7, s7, 14
s_add_u32 s{sKO}, s{sKO}, s7"""


def decode():
    m = CFG.get("map", "c")
    if m == "d":
        return """s_and_b32 s3, s2, 7
s_lshr_b32 s6, s2, 3
s_lshr_b32 s53, s3, 2
s_and_b32 s3, s3, 3
s_lshl_b32 s3, s3, 1
s_lshr_b32 s7, s6, 4
s_add_u32 s3, s3, s7
s_and_b32 s6, s6, 15
s_mov_b32 s90, s6
s_mov_b32 s91, s7"""
    if m == "c":
        return """s_and_b32 s3, s2, 7
s_lshr_b32 s6, s2, 3
s_lshr_b32 s53, s3, 2
s_bfe_u32 s7, s3, 0x10001
s_and_b32 s3, s3, 1
s_lshl_b32 s3, s3, 3
s_lshl_b32 s7, s7, 2
s_lshr_b32 s54, s6, 3
s_add_u32 s7, s7, s54
s_and_b32 s6, s6, 7
s_mov_b32 s90, s6
s_mov_b32 s91, s54
s_add_u32 s6, s6, s3
s_mov_b32 s3, s7"""
    if m == "b":
        return """s_and_b32 s3, s2, 7
s_lshr_b32 s6, s2, 3
s_lshr_b32 s53, s3, 2
s_and_b32 s3, s3, 3
s_lshl_b32 s3, s3, 2
s_lshr_b32 s7, s6, 2
s_and_b32 s6, s6, 3
s_mov_b32 s90, s6
s_mov_b32 s91, s7
s_add_u32 s6, s6, s3
s_mov_b32 s3, s7"""


NB_G, NH_G = {"d": (16, 2), "c": (8, 4), "b": (4, 8)}[CFG.get("map", "c")]


def warm_patterns(kind):
    t0, t1, t2 = T0, T0 + 1, T0 + 2
    out = []
    if kind == "qp":
        rows = 448 // NB_G // 4
        out += [salu(f"s_lshl_b32 s{sT}, s{sBL}, 2"), salu(f"s_add_u32 s{sT}, s{sT}, s{sWV}"),
                salu(f"s_mul_i32 s{sT}, s{sT}, {rows}"),
                valu(f"v_lshrrev_b32 v{t0}, 2, v{VL}"),
                valu(f"v_min_u32 v{t0}, {rows-1}, v{t0}"),
                valu(f"v_add_u32 v{t0}, s{sT}, v{t0}"),
                valu(f"v_lshlrev_b32 v{t0}, 13, v{t0}"),
                valu(f"v_and_b32 v{t2}, 3, v{VL}"),
                valu(f"v_lshlrev_b32 v{t2}, 7, v{t2}"),
                valu(f"v_add_u32 v{t0}, v{t0}, v{t2}"),
                salu(f"s_mov_b32 s{sWM1}, s{sWQB}")]
        lines = 1344 // NH_G // 4
        out += [salu(f"s_lshl_b32 s{sT}, s{sHL}, 2"), salu(f"s_add_u32 s{sT}, s{sT}, s{sWV}"),
                salu(f"s_mul_i32 s{sT}, s{sT}, {lines*128}"),
                salu(f"s_add_u32 s{sWM2}, s{sXO}, s{sT}"),
                valu(f"v_lshlrev_b32 v{t1}, 7, v{VL}")]
    else:
        lines = 3584 // NB_G // 4
        out += [salu(f"s_lshl_b32 s{sT}, s{sBL}, 2"), salu(f"s_add_u32 s{sT}, s{sT}, s{sWV}"),
                salu(f"s_mul_i32 s{sT}, s{sT}, {lines*128}"),
                salu(f"s_mul_i32 s{sWM1}, s{sHEAD}, {256*896}"),
                salu(f"s_add_u32 s{sWM1}, s{sWM1}, s{sT}"),
                salu(f"s_add_u32 s{sWM2}, s{sWM1}, 8192"),
                valu(f"v_lshlrev_b32 v{t0}, 7, v{VL}"),
                valu(f"v_lshlrev_b32 v{t1}, 7, v{VL}")]
    return out


def warm_items(e=0, part=None):
    if not CFG.get("warm", True):
        return []
    n = max(-(-(1344 // NH_G // 4) // 64), -(-(3584 // NB_G // 4) // 64) - 1)
    if not CFG.get("xwarm", True):
        n = -(-(3584 // NB_G // 4) // 64) - 1
    if part is not None:
        if part == 0:
            return [Item([vmem(f"buffer_load_dword a{A_DUMMY}, v{T0}, {sr(sW)}, s{sWM1} offen", tag="touch")], earliest=e, alone=True)]
        if part <= n:
            return [Item([vmem(f"buffer_load_dword a{A_DUMMY+1}, v{T0+1}, {sr(sX)}, s{sWM2} offen", tag="touch")], earliest=e, alone=True),
                    Item([salu(f"s_add_u32 s{sWM2}, s{sWM2}, 8192")], earliest=e)]
        return []
    items = [Item([vmem(f"buffer_load_dword a{A_DUMMY}, v{T0}, {sr(sW)}, s{sWM1} offen", tag="touch")], earliest=e, alone=True)]
    for k in range(n):
        items.append(Item([vmem(f"buffer_load_dword a{A_DUMMY+1}, v{T0+1}, {sr(sX)}, s{sWM2} offen", tag="touch")],
                          earliest=e + 3 * (k + 1), alone=True))
        items.append(Item([salu(f"s_add_u32 s{sWM2}, s{sWM2}, 8192")], earliest=e))
    return items


def main_kernel():
    P = []
    c_scale = f2u(math.log2(math.e) / 16.0)
    pro = [raw(x) for x in f"""
s_cmp_ge_u32 s2, 256
s_cbranch_scc1 L_exit
s_load_dwordx16 s[64:79], s[0:1], 0
s_load_dwordx4 s[80:83], s[0:1], 64
s_load_dwordx2 s[4:5], s[0:1], 96
s_load_dwordx2 s[94:95], s[0:1], 88
v_lshrrev_b32 v1, 6, v0
v_and_b32 v{VL}, 63, v0
v_readfirstlane_b32 s{sWV}, v1
{decode()}
s_lshl_b32 s{sHEAD}, s3, 1
s_lshl_b32 s{sWVOFF}, s{sWV}, 12
s_mul_i32 s{sXO}, s6, 172032
s_lshl_b32 s7, s6, 4
s_add_u32 s7, s7, s{sHEAD}
s_lshl_b32 s{sKO}, s7, 18
{rot_init()}
s_mov_b32 s{sVO}, s{sKO}
s_lshl_b32 s{sWQB}, s{sHEAD}, 9
s_mov_b32 s{sINCA}, {128*896}
s_mov_b32 s{sINCB}, {(128 - 3*128*896) & 0xffffffff:#x}
s_lshl_b32 s7, s53, 4
s_add_u32 s7, s7, s6
s_mov_b32 s92, s7
s_lshl_b32 s7, s7, 3
s_add_u32 s7, s7, s3
s_mul_i32 s{sPAO}, s7, 172032
s_mul_i32 s3, s{sWV}, 43008
s_add_u32 s{sPAO}, s{sPAO}, s3
s_mul_i32 s{sSTO}, s2, 98304
s_mul_i32 s3, s{sWV}, 24576
s_add_u32 s{sSTO}, s{sSTO}, s3
s_add_u32 s{sSTO}, s{sSTO}, {48<<20}
s_mov_b32 s{sSC}, {c_scale:#x}
s_mov_b32 s{sSC+1}, {c_scale:#x}
s_mov_b32 s{sB}, {f2u(CFG['B']):#x}
s_mov_b32 s{sWR}, 0
s_mov_b32 s{sRD}, 0
s_mov_b32 s{sVAB}, 0
s_mov_b32 s{sKAB}, 0
s_mov_b32 s{sU}, 0
""".strip().splitlines()]
    if CFG.get("prof"):
        pro = [raw("s_memrealtime s[100:101]")] + pro
    P += pro
    t, u = T0, T0 + 1
    P += pat_x() + pat_wq()
    P += [raw(x) for x in f"""
s_waitcnt lgkmcnt(0)
s_cmp_eq_u32 s53, 0
s_cselect_b32 s{sX}, s64, s74
s_cselect_b32 s{sX+1}, s65, s75
s_cselect_b32 s{sK}, s66, s76
s_cselect_b32 s{sK+1}, s67, s77
s_cselect_b32 s{sV}, s68, s78
s_cselect_b32 s{sV+1}, s69, s79
s_cselect_b32 s{sW}, s70, s80
s_cselect_b32 s{sW+1}, s71, s81
s_cselect_b32 s{sWOP}, s72, s82
s_cselect_b32 s{sWOP+1}, s73, s83
s_mov_b32 s{sX+2}, 2752512
s_mov_b32 s{sX+3}, 0x00020000
s_mov_b32 s{sK+2}, 67108864
s_mov_b32 s{sK+3}, 0x00020000
s_mov_b32 s{sV+2}, 67108864
s_mov_b32 s{sV+3}, 0x00020000
s_mov_b32 s{sW+2}, 3670016
s_mov_b32 s{sW+3}, 0x00020000
s_mov_b32 s{sWS}, s4
s_mov_b32 s{sWS+1}, s5
s_mov_b32 s{sWS+2}, 288620544
s_mov_b32 s{sWS+3}, 0x00020000
""".strip().splitlines()]
    P += [raw(f"s_mov_b32 s{sBL}, s90"), raw(f"s_mov_b32 s{sHL}, s91"), raw(f"s_mov_b32 s{sGRP}, s92")]
    if CFG.get("touch"):
      P += [raw(f"s_cmp_lt_u32 s{sWV}, 2"),
          raw(f"s_cselect_b32 s{sTS}, s{sK}, s{sV}"), raw(f"s_cselect_b32 s{sTS+1}, s{sK+1}, s{sV+1}"),
          raw(f"s_mov_b32 s{sTS+2}, 67108864"), raw(f"s_mov_b32 s{sTS+3}, 0x00020000"),
          raw(f"s_mov_b32 s{sTO}, s{sKO}"), raw(f"s_mov_b32 s{sKBASE}, s{sKO}"),
          raw(f"s_and_b32 s{sT}, s{sWV}, 1"), raw(f"s_lshl_b32 s{sT}, s{sT}, 13"),
          valu(f"v_lshlrev_b32 v{VTO}, 7, v{VL}"), valu(f"v_add_u32 v{VTO}, s{sT}, v{VTO}")]
    if CFG.get("cwarm", True):
        nblk = CFG.get("cblk", 10)
        P += [raw("s_getpc_b64 s[88:89]"), label("L_pc"),
              raw("s_and_b32 s88, s88, 0xffffff00"),
              raw("s_mov_b32 s90, L_codeend-L_pc"), raw("s_mov_b32 s91, 0x00020000"),
              raw("s_lshr_b32 s92, s2, 3"), raw("s_lshl_b32 s92, s92, 2"), raw(f"s_add_u32 s92, s92, s{sWV}"),
              raw(f"s_mul_hi_u32 s{sT}, s92, {-(-(1<<32)//nblk)}"), raw(f"s_mul_i32 s{sT}, s{sT}, {nblk}"),
              raw(f"s_sub_u32 s92, s92, s{sT}"), raw("s_lshl_b32 s92, s92, 13"),
              valu(f"v_lshlrev_b32 v{XAP}, 7, v{VL}")]
        cw = [vmem(f"buffer_load_dword a{A_DUMMY+2}, v{XAP}, s[88:91], s92 offen", tag="touch")]
    else:
        cw = []
    if CFG.get("pipe"):
        P += [raw(f"s_lshl_b32 s93, s{sGRP}, 2"), raw(f"s_lshl_b32 s{sCO}, s{sGRP}, 8"), raw(f"s_add_u32 s{sCO}, s{sCO}, {100 << 20}"),
              raw(f"s_or_b32 s99, s{sHEAD}, s{sWV}"), raw("s_cmp_eq_u32 s99, 0"),
              raw(f"s_cselect_b32 s99, 0, {0x7f000000:#x}"),
              valu(f"v_mov_b32 v{T0}, {0x7f000000:#x}"), valu(f"v_mov_b32 v{T0+1}, s99"),
              valu(f"v_cmp_eq_u32 vcc, 0, v{VL}"), salu("s_nop 1"),
              valu(f"v_cndmask_b32 v{T0+2}, v{T0}, v{T0+1}, vcc"),
              valu(f"v_mov_b32 v{T0+1}, 0"),
              vmem(f"buffer_store_dword v{T0+1}, v{T0+2}, {sr(sWS)}, s{sCO} offen sc1", tag="cinit"),
              raw("s_mov_b32 s76, s94"), raw("s_mov_b32 s77, s95"), raw("s_mov_b32 s78, 256"), raw("s_mov_b32 s79, 0x00020000")]
        pass
    P += next_offsets_qp()
    NPRO = CFG.get("npro", 4)
    for p in range(NPRO):
        P += dma_now(("N", p))
        if p + 1 == CFG.get("pcw", 4):
            P += cw
        for _ in range(list(CFG.get("ptouch", (8, 8))).count(p + 1)):
            for it in touch_items():
                P += it.ins
        if p + 1 == CFG.get("pwarm", 4):
            P += warm_patterns("qp")
            for it in warm_items():
                P += it.ins
    P += [valu(f"v_lshrrev_b32 v{t}, 2, v{VL}"),
          valu(f"v_and_b32 v{u}, 7, v{t}"),
          valu(f"v_lshlrev_b32 v{u}, 1, v{u}"),
          valu(f"v_bfe_u32 v{t+2}, v{VL}, 1, 1"),
          valu(f"v_xor_b32 v{u}, v{u}, v{t+2}"),
          valu(f"v_lshlrev_b32 v{u}, 4, v{u}"),
          valu(f"v_lshlrev_b32 v{t}, 9, v{t}"),
          valu(f"v_add_u32 v{t}, v{t}, v{u}"),
          valu(f"v_and_b32 v{u}, 1, v{VL}"),
          valu(f"v_lshlrev_b32 v{u}, 3, v{u}"),
          valu(f"v_add_u32 v{t}, v{t}, v{u}")]
    P += [valu(f"v_xor_b32 v{VA+b}, {b<<5}, v{t}") for b in range(8)]
    P += [valu(f"v_and_b32 v{t}, 15, v{VL}"),
          valu(f"v_and_b32 v{u}, 7, v{t}"),
          valu(f"v_lshlrev_b32 v{u}, 1, v{u}"),
          valu(f"v_lshrrev_b32 v{t+2}, 4, v{VL}"),
          valu(f"v_xor_b32 v{u}, v{u}, v{t+2}"),
          valu(f"v_lshlrev_b32 v{u}, 4, v{u}"),
          valu(f"v_lshlrev_b32 v{t}, 9, v{t}"),
          valu(f"v_add_u32 v{t}, v{t}, v{u}")]
    P += [valu(f"v_xor_b32 v{KA+b}, {b<<6}, v{t}") for b in range(4)]
    P += [valu(f"v_lshrrev_b32 v{t}, 5, v{VL}"),
          valu(f"v_and_b32 v{u}, 31, v{VL}"),
          valu(f"v_lshlrev_b32 v{t+2}, 1, v{t}"),
          valu(f"v_xor_b32 v{u}, v{u}, v{t+2}"),
          valu(f"v_lshlrev_b32 v{u}, 4, v{u}"),
          valu(f"v_lshlrev_b32 v{t}, 9, v{t}"),
          valu(f"v_add_u32 v{t}, v{t}, v{u}"),
          valu(f"v_add_u32 v{t}, s{sWVOFF}, v{t}")]
    P += [valu(f"v_xor_b32 v{DVKV+n}, {n<<6}, v{t}") for n in range(4)]
    P += [valu(f"v_and_b32 v{t}, 15, v{VL}"),
          valu(f"v_lshrrev_b32 v{u}, 4, v{VL}"),
          valu(f"v_xor_b32 v{u}, v{u}, v{t}"),
          valu(f"v_lshlrev_b32 v{u}, 4, v{u}"),
          valu(f"v_lshlrev_b32 v{t}, 8, v{t}"),
          valu(f"v_add_u32 v{t}, v{t}, v{u}"),
          valu(f"v_add_u32 v{XAP}, s{sWVOFF}, v{t}"),
          valu(f"v_lshlrev_b32 v{LN16}, 4, v{VL}"),
          valu(f"v_mov_b32 v{t}, 0x3f803f80")]
    P += [valu(f"v_accvgpr_write_b32 a{A_ONES+j}, v{t}") for j in range(4)]
    if CFG.get("prof"):
        P += [raw(f"v_mov_b32 v{PROFV}, 0"), raw("s_memrealtime s[96:97]"), raw("s_waitcnt lgkmcnt(0)"), raw("s_nop 3"),
              raw(f"v_writelane_b32 v{PROFV}, s96, 40"), raw(f"v_writelane_b32 v{PROFV}, s100, 42")]
    P += stamp("start")
    if CFG.get("delay"):
        P += [raw(f"s_bitcmp1_b32 s2, {CFG.get('dbit', 3)}"), raw("s_cbranch_scc0 L_nodelay"), raw(f"s_mov_b32 s{sT}, {CFG['delay']}"),
              label("L_dl"), raw("s_sleep 16"), raw(f"s_sub_u32 s{sT}, s{sT}, 1"), raw(f"s_cmp_lg_u32 s{sT}, 0"),
              raw("s_cbranch_scc1 L_dl"), label("L_nodelay")]

    idxW, xstep, issue, allt = plan_qp()
    U = [label("L_unit")]
    U += stamp("unit")
    U += [salu(f"s_mov_b32 s{sXS}, s{sRD}")]
    sq = setup_next("V", nadv=idxW[0], save=[sXS + 1, sXS + 2])
    U += sq + addr_updates("V")
    pre_x = []
    for qt in range(3):
        pre_x += [i for it in x_read_items(0, qt, [0]) for i in it.ins]
    U += restart("V", nvis=idxW[0] + 1, pre_reads=pre_x, lg=[("x", 0)])
    U += stamp("qp_go")

    def dkind(i):
        tl = allt[i]
        if tl[0] == "W": return ("QW", tl[1])
        if tl[0] == "X": return ("QX", tl[1], tl[2])
        return ATT_ORDER[tl[1]]
    stash_n = 0
    xtiles_by_step = {}
    for i, s in xstep.items():
        xtiles_by_step.setdefault(s, []).append(ORDER[i])
    last_w_issue = max(ks for ks in range(14) if any(i < NQ for i in issue[ks]))
    last_w_issue = max(last_w_issue, max(xstep.values()))
    for ks in range(14):
        last = ks == 13
        q = []
        sync_lg = []
        xq = []
        for tl in xtiles_by_step.get(ks, []):
            ss = [1, 2, 3] if tl[1] == 0 else [0, 1, 2, 3]
            xq += x_read_items(tl[1], tl[2], ss)
        front = []
        if xq:
            front.append(xq)
            lastks = max(k for tl in xtiles_by_step[ks] for k in range(4 * tl[1], min(14, 4 * tl[1] + 4)))
            sync_lg = [("x", lastks)]
        if ks in CFG.get("qtouch", (1, 4, 7, 10)):
            q.append(touch_items(CFG.get("qtgap", 36)))
        if last:
            nadv, save = 1, ()
        else:
            nadv = idxW[ks + 1] - idxW[ks]
            save = [sXS + j for j in range(nadv - 1)]
        extra = {}
        if CFG.get("pipe") and ks == 4:
            extra = dict(sync_vm=[("opt", "cinit")],
                         post_sync=[valu(f"v_min_u32 v{T0+2}, 1, v{VL}"), valu(f"v_lshlrev_b32 v{T0+2}, 30, v{T0+2}"),
                                    valu(f"v_or_b32 v{T0+2}, s99, v{T0+2}"),
                                    vmem(f"buffer_store_dword a{A_ONES}, v{T0+2}, s[76:79], s93 offen sc1", tag="sig")])
        def mkphase(dmas, q_):
            import copy
            return phase("V", mf_qp(ks), "K" if last else "V", readahead=not last, dma=dmas, **extra,
                         queues=q_, front=[copy.deepcopy(f_) for f_ in front], nvis=nadv, nadv=nadv, save=save, sync_lg=sync_lg,
                         end_lg=[("x", ks + 1)] if not last else (), sect="qp")
        if ks == 0 and NPRO < 8:
            U += [raw(f"s_cmp_eq_u32 s{sU}, 0"), raw("s_cbranch_scc0 L_q0b")]
            wq_ = [warm_items(30)] if CFG.get("pwarm0", False) else []
            U.append(Cond(mkphase([("N", p) for p in range(NPRO, 8)] + [dkind(i) for i in issue[ks]], q + wq_)
                          + [raw("s_branch L_q0e")], lambda e: e["u"] == 0))
            U.append(label("L_q0b"))
            U.append(Cond(mkphase([dkind(i) for i in issue[ks]], q), lambda e: e["u"] == 1))
            U.append(label("L_q0e"))
        else:
            U += mkphase([dkind(i) for i in issue[ks]], q)
        if ks == last_w_issue:
            U += [raw(f"s_cmp_eq_u32 s{sU}, 0"), raw("s_cbranch_scc0 L_wsw1")]
            U.append(Cond([raw(f"s_add_u32 s{sWQB}, s{sWQB}, 512")] + next_offsets_qp() + warm_patterns("qp")
                          + [raw("s_branch L_wsw2")], lambda e: e["u"] == 0))
            U.append(label("L_wsw1"))
            sw = [raw(f"s_mov_b32 s{sW}, s{sWOP}"), raw(f"s_mov_b32 s{sW+1}, s{sWOP+1}"),
                  raw(f"s_mov_b32 s{sX}, s{sWOP}"), raw(f"s_mov_b32 s{sX+1}, s{sWOP+1}"),
                  raw(f"s_mov_b32 s{sX+2}, 3670016"),
                  raw(f"s_mul_i32 s{sWO}, s{sHEAD}, {256*896}")]
            sw += [raw(f"s_add_u32 s{sN+p}, s{sWO}, {wo_off(p)}") for p in range(8)]
            sw += [raw(f"s_add_u32 s{sWO}, s{sWO}, {wo_off(8)}")]
            U.append(Cond(sw + pat_wo() + warm_patterns("wo"), lambda e: e["u"] == 1))
            U.append(label("L_wsw2"))
    U += stamp("qp_end")
    U += q_convert()
    U += stamp("qconv_end")
    if CFG["dbg"] == "q":
        U += dump_regs([4 * b for b in range(24)], "v", 0)
    U += fine("att", "pre_restart")
    U += restart("K")
    U += fine("att", "post_restart")
    U += phase("K", mf_qk(0, zero_c=True), "K", dma=["V"], sect="att")
    U += fine("att", "a0_end")
    U += init_max()
    U += fine("att", "init_end")
    U += phase("K", mf_qk(1), "V", dma=["K"], queues=[softmax_items(0)], sect="att")

    def kind(a):
        p = a + 8
        if p >= 32:
            return ("N", p - 32)
        return ATT_ORDER[p]

    def iteration(i, first=False):
        par, np_ = i & 1, (i + 1) & 1
        sm = softmax_items(np_, e0=3, e1=3)
        pre, m = mf_pv(par, first)
        tq = []
        ws_ = CFG.get("wspread")
        if ws_ is not None and i in ws_:
            tq.append(warm_items(12, part=ws_.index(i)))
        elif ws_ is None and i == CFG.get("iwarm", 9):
            tq.append(warm_items(12))
        at = CFG.get("atouch", ())
        if (1 <= i <= 8 and "loop" in at) or i in at:
            tq.append(touch_items(30))
        tt = CFG.get("ttouch", (11, 13))
        if i in tt:
            pre_ = []
            if i == tt[0] and CFG.get("touch"):
                pre_ = [Item([salu(f"s_add_u32 s{sTO}, s{sKBASE}, 0x40000")])]
            tq.append(pre_ + touch_items(30, cond_u0=True))
        c_body = phase("V", m, "K", pre=pre, dma=[kind(2 * i + 2)], queues=tq, keep=sm, sect="att")
        a_body = phase("K", mf_qk(par), "V", dma=[kind(2 * i + 3)], queues=[sm], tail=check(np_), sect="att")
        return c_body + a_body

    U += iteration(0, first=True)
    if CFG.get("unroll"):
        for i in range(1, 9):
            U += iteration(i)
    else:
        lp = [label("L_att")] + iteration(1) + iteration(2)
        lp += [raw(f"s_sub_u32 s{sCNT}, s{sCNT}, 1"), raw(f"s_cmp_lg_u32 s{sCNT}, 0"), raw("s_cbranch_scc1 L_att")]
        U.append(raw(f"s_mov_b32 s{sCNT}, 4"))
        U.append(Loop(lp, 4))
    for i in range(9, 14):
        U += iteration(i)
    pre, m = mf_pv(0)
    U += phase("V", m, "V", pre=pre, dma=[kind(30)], queues=[softmax_items(1, e0=3, e1=3)], tail=check(1), sect="att")
    U += [raw(f"s_cmp_eq_u32 s{sU}, 0"), raw("s_cbranch_scc0 L_c15b")]
    pre, m = mf_pv(1)
    U.append(Cond(phase("V", m, "V", pre=pre, dma=[kind(31)], readahead=False, retarget=False)
                  + [raw("s_branch L_c15e")], lambda e: e["u"] == 0))
    U.append(label("L_c15b"))
    pre, m = mf_pv(1)
    U.append(Cond(phase("V", m, "V", pre=pre, dma=[kind(31)], readahead=False, retarget=False,
                        queues=[o0_load_items(3)]), lambda e: e["u"] == 1))
    U.append(label("L_c15e"))
    U += fine("att", "c15_end")
    if CFG.get("rot", False):
        U += [raw(f"s_add_u32 s{sKO}, s{sKO}, 0x40000"), raw(f"s_add_u32 s{sVO}, s{sVO}, 0x40000")]
    U += stamp("att_end")
    U += [raw(f"s_cmp_eq_u32 s{sU}, 1"), raw("s_cbranch_scc1 L_oc1")]
    U.append(Cond(o_convert(True) + stamp("oconv_end") + [raw(f"s_mov_b32 s{sU}, 1"), raw("s_branch L_unit")],
                  lambda e: e["u"] == 0))
    U.append(label("L_oc1"))
    U.append(Cond(o_convert(False) + (dump_regs([96 + 4 * b for b in range(24)], "v", 0) if CFG["dbg"] == "o" else [])
                  + stamp("oconv_end1"), lambda e: e["u"] == 1))
    P.append(Repeat(U, 2, "u"))

    P.append(label("L_p4"))
    P += pat_oa()

    def epilogue_items(buf, spread):
        items = []
        n = 0
        for pair in range(2):
            for qt in range(3):
                e0 = spread[n]
                a0, a1 = pacc(buf, 2 * pair, qt), pacc(buf, 2 * pair + 1, qt)
                rd = VA
                items += [Item([valu(f"v_accvgpr_read_b32 v{rd+j}, a{a0+j}")], earliest=e0) for j in range(4)]
                items += [Item([valu(f"v_accvgpr_read_b32 v{rd+4+j}, a{a1+j}")], earliest=e0) for j in range(4)]
                o = T0 if n % 2 == 0 else DVKV
                items += [Item([valu(f"v_cvt_pk_bf16_f32 v{o+j}, v{rd+2*j}, v{rd+2*j+1}")], earliest=e0) for j in range(4)]
                items.append(Item([salu(f"s_add_u32 s{sT+1}, s{sPAO}, {n*1024}")], earliest=e0))
                items.append(Item([vmem(f"buffer_store_dwordx4 {vr(o)}, v{LN16}, {sr(sWS)}, s{sT+1} offen{CFG.get('pstf','')}",
                                        tag="pst")], earliest=e0, alone=True))
                n += 1
        items.append(Item([salu(f"s_add_u32 s{sPAO}, s{sPAO}, 6144")]))
        return items

    def chunk(buf, epi_prev, last=False, dma=True):
        out = []
        stream = epilogue_items(1 - buf, [6] * 6) if epi_prev else []
        cuts = [0, 21, 42, 63, len(stream)] if stream else [0] * 5
        for w in range(4):
            hd, f = w >> 1, w & 1
            winc = sINCB if w == 3 else sINCA
            is_last = last and w == 3
            part = stream[cuts[w]:cuts[w + 1]]
            out += phase("O", mf_op(buf, hd, f), "O", readahead=not is_last, dma=[("W", winc)] if dma else [],
                         queues=[part] if part else [], setup=not is_last, sect="p4")
        return out

    sDBG, sOUTD = 76, 12
    sCH, sRO, sOO, sBIT, sSH, sTHR, sRB, sOB, sGO, sPV, sKK, sTM, sOOP = 60, 61, 62, 63, 64, 65, 66, 67, 68, 69, 70, 71, 73
    vD, vP, vSIG, vOUT, vPO = DVX, DVX + 1, DVX + 2, DVX + 3, XAP
    A_SEL = 96
    OOB = 0x7f000000
    spins = []

    def pipe_setup():
        L = [raw("s_load_dwordx2 s[12:13], s[0:1], 80"),
             raw("s_mov_b32 s14, 5505024"), raw("s_mov_b32 s15, 0x00020000")]
        t, u, v = T0, T0 + 1, T0 + 2
        L += [valu(f"v_and_b32 v{t}, 15, v{VL}"),
              valu(f"v_lshrrev_b32 v{u}, 2, v{t}"),
              valu(f"v_lshrrev_b32 v{v}, 4, v{VL}"),
              valu(f"v_cmp_eq_u32 vcc, v{u}, v{v}"),
              valu(f"v_and_b32 v{u}, 1, v{t}"),
              valu(f"v_lshlrev_b32 v{u}, 4, v{u}"),
              valu(f"v_mov_b32 v{v}, 0x3f80"),
              valu(f"v_lshlrev_b32 v{v}, v{u}, v{v}"),
              valu(f"v_cndmask_b32 v{v}, 0, v{v}, vcc"),
              valu(f"v_and_b32 v{u}, 2, v{t}"),
              valu(f"v_cmp_eq_u32 vcc, 0, v{u}"),
              salu("s_nop 1"),
              valu(f"v_cndmask_b32 v{t}, 0, v{v}, vcc"),
              valu(f"v_cndmask_b32 v{u}, v{v}, 0, vcc".replace(f"v{v}, 0, vcc", f"v{v}, v{T0+3}, vcc"))]
        L.insert(len(L) - 1, valu(f"v_mov_b32 v{T0+3}, 0"))
        L += [valu(f"v_accvgpr_write_b32 a{A_SEL}, v{t}"), valu(f"v_accvgpr_write_b32 a{A_SEL+1}, v{u}"),
              valu(f"v_accvgpr_write_b32 a{A_SEL+2}, v{T0+3}"), valu(f"v_accvgpr_write_b32 a{A_SEL+3}, v{T0+3}"),
              valu(f"v_accvgpr_write_b32 a{A_SEL+4}, v{T0+3}"), valu(f"v_accvgpr_write_b32 a{A_SEL+5}, v{T0+3}"),
              valu(f"v_accvgpr_write_b32 a{A_SEL+6}, v{t}"), valu(f"v_accvgpr_write_b32 a{A_SEL+7}, v{u}")]
        L += [salu(f"s_cmp_eq_u32 s{sWV}, 0"), salu(f"s_cselect_b32 s{sTM}, 0, {OOB:#x}"),
              valu(f"v_mov_b32 v{vSIG}, {OOB:#x}"), valu(f"v_mov_b32 v{vPO}, s{sTM}"),
              valu(f"v_cmp_eq_u32 vcc, 0, v{VL}"), salu("s_nop 1"),
              valu(f"v_cndmask_b32 v{vSIG}, v{vSIG}, v{vPO}, vcc"),
              valu(f"v_and_b32 v{t}, 15, v{VL}"), valu(f"v_mul_u32_u24 v{t}, 1792, v{t}"),
              valu(f"v_lshrrev_b32 v{u}, 4, v{VL}"), valu(f"v_lshlrev_b32 v{u}, 3, v{u}"),
              valu(f"v_add_u32 v{vOUT}, v{t}, v{u}")]
        L += [salu(f"s_lshl_b32 s{sGO}, s{sGRP}, 2"),
              salu(f"s_lshr_b32 s{sTM}, s{sHEAD}, 2"),
              salu(f"s_bfe_u32 s{sKK}, s{sHEAD}, 0x10001"),
              salu(f"s_mul_i32 s{sRB}, s{sGRP}, {8*172032}"),
              salu(f"s_mul_i32 s{sPV}, s{sTM}, {42*1024}"), salu(f"s_add_u32 s{sRB}, s{sRB}, s{sPV}"),
              salu(f"s_mul_i32 s{sPV}, s{sKK}, {3*1024}"), salu(f"s_add_u32 s{sRB}, s{sRB}, s{sPV}"),
              salu(f"s_and_b32 s{sOB}, s{sGRP}, 15"), salu(f"s_mul_i32 s{sOB}, s{sOB}, 192"),
              salu(f"s_mul_i32 s{sPV}, s{sTM}, 48"), salu(f"s_add_u32 s{sOB}, s{sOB}, s{sPV}"),
              salu(f"s_mul_i32 s{sOB}, s{sOB}, 1792"),
              salu(f"s_lshr_b32 s{sPV}, s{sGRP}, 4"), salu(f"s_mul_i32 s{sPV}, s{sPV}, 896"),
              salu(f"s_add_u32 s{sOB}, s{sOB}, s{sPV}"),
              salu(f"s_lshl_b32 s{sPV}, s{sKK}, 6"), salu(f"s_add_u32 s{sOB}, s{sOB}, s{sPV}"),
              salu(f"s_mov_b32 s{sCH}, 1"), salu(f"s_mov_b32 s{sOOP}, {OOB:#x}"),
              salu(f"s_cmp_eq_u32 s{sWV}, 0"), salu(f"s_cselect_b32 s{sTHR}, 1, 0"), salu(f"s_mov_b32 s{sSH}, 0"),
              vmem(f"buffer_load_dword v{vP}, v{vPO}, {sr(sDBG)}, s{sGO} offen sc1", tag="poll"),
              raw("s_waitcnt lgkmcnt(0)")]
        return L

    def unit_offsets(y_expr_const=None, lag=3):
        L = []
        if y_expr_const is None:
            L += [[salu(f"s_sub_u32 s{sTM}, s{sCH}, {lag}")]]
        else:
            L += [[salu(f"s_mov_b32 s{sTM}, {y_expr_const}")]]
        L += [[salu(f"s_sub_u32 s{sKK}, s{sWV}, s{sTM}")], [salu(f"s_and_b32 s{sKK}, s{sKK}, 3")],
              [salu(f"s_mul_i32 s{sRO}, s{sTM}, 6144")], [salu(f"s_lshl_b32 s{sPV}, s{sKK}, 10")],
              [salu(f"s_add_u32 s{sRO}, s{sRO}, s{sPV}")], [salu(f"s_add_u32 s{sRO}, s{sRO}, s{sRB}")],
              [salu(f"s_mul_i32 s{sOO}, s{sKK}, {16*1792}")], [salu(f"s_lshl_b32 s{sPV}, s{sTM}, 7")],
              [salu(f"s_add_u32 s{sOO}, s{sOO}, s{sPV}")], [salu(f"s_add_u32 s{sOO}, s{sOO}, s{sOB}")],
              [salu(f"s_cmp_lt_u32 s{sKK}, 3"), salu(f"s_cselect_b32 s{sRO}, s{sRO}, {OOB:#x}"),
               salu(f"s_cselect_b32 s{sOO}, s{sOO}, {OOB:#x}")]]
        if y_expr_const is None:
            L += [[salu(f"s_cmp_ge_u32 s{sCH}, {lag}"), salu(f"s_cselect_b32 s{sRO}, s{sRO}, {OOB:#x}"),
                   salu(f"s_cselect_b32 s{sOO}, s{sOO}, {OOB:#x}")]]
        return L

    def red_loads(base=0):
        it = []
        for j in range(8):
            if j:
                it.append(Item([salu(f"s_add_u32 s{sRO}, s{sRO}, 172032")]))
            it.append(Item([vmem(f"buffer_load_dwordx4 {vr(base+4*j)}, v{LN16}, {sr(sWS)}, s{sRO} offen sc1", tag=("red", base))], alone=True))
        return it

    def red_mfmas(base=0, d=32):
        m = []
        for j in range(8):
            m.append(mfma(f"{MF} {vr(d)}, {ar(A_SEL)}, {vr(base+4*j)}, {'0' if j == 0 else vr(d)}"))
            m.append(mfma(f"{MF} {vr(d+4)}, {ar(A_SEL+4)}, {vr(base+4*j)}, {'0' if j == 0 else vr(d+4)}"))
        return m

    def red_finish(so, d=32, o=40, e=0):
        it = [Item([valu(f"v_cvt_pk_bf16_f32 v{o+j}, v{d+2*j}, v{d+2*j+1}")], earliest=e) for j in range(4)]
        it.append(Item([vmem(f"buffer_store_dwordx2 {vr(o,2)}, v{vOUT}, {sr(sOUTD)}, s{so} offen", tag="out")], earliest=e, alone=True))
        it.append(Item([vmem(f"buffer_store_dwordx2 {vr(o+2,2)}, v{vOUT}, {sr(sOUTD)}, s{so} offen offset:32", tag="out")], earliest=e, alone=True))
        return it

    def check_poll(dbg=False, mask=15):
        k = len(spins); spins.append((k, dbg, mask))
        return [salu(f"v_readfirstlane_b32 s{sPV}, v{vP}"), salu("s_nop 0"),
                salu(f"s_lshr_b32 s{sPV}, s{sPV}, s{sSH}"), salu(f"s_and_b32 s{sPV}, s{sPV}, {mask}"),
                salu(f"s_cmp_ge_u32 s{sPV}, s{sTHR}"), salu(f"s_cbranch_scc0 L_spin{k}"), label(f"L_spun{k}")]

    def spin_stub(ent):
        k, dbg, mask = ent
        src = f"{sr(sDBG)}, s{sGO}" if dbg else f"{sr(sWS)}, s{sCO}"
        return [label(f"L_spin{k}"), raw(f"s_mov_b32 s{sTM}, 0"), label(f"L_spinl{k}"),
                raw("s_sleep 2"),
                raw(f"buffer_load_dword v{vP}, v{vPO}, {src} offen sc1"), raw("s_waitcnt vmcnt(0)"),
                raw(f"v_readfirstlane_b32 s{sPV}, v{vP}"), raw(f"s_add_u32 s{sTM}, s{sTM}, 1"),
                raw(f"s_lshr_b32 s{sPV}, s{sPV}, s{sSH}"), raw(f"s_and_b32 s{sPV}, s{sPV}, {mask}"),
                raw(f"s_cmp_ge_u32 s{sPV}, s{sTHR}"), raw(f"s_cbranch_scc1 L_spun{k}"),
                raw(f"s_cmp_lt_u32 s{sTM}, 0x200000"), raw(f"s_cbranch_scc1 L_spinl{k}"), raw(f"s_branch L_spun{k}")]

    def epi_items(buf):
        it = epilogue_items(buf, [6] * 6)
        for x in it:
            for i in x.ins:
                if isinstance(i, Ins) and i.tag == "pst":
                    i.tag = ("pst", buf)
        return it

    def pchunk(buf, last=False, dma=True):
        out = []
        st = epi_items(1 - buf)
        parts = [st[0:42], st[42:]]
        sc0 = [Item([salu(f"s_sub_u32 s{sTM}, s{sCH}, 2")]), Item([salu(f"s_lshl_b32 s{sTM}, s{sTM}, 2")]),
               Item([salu(f"s_lshl_b32 s{sBIT}, 1, s{sTM}")]),
               Item([salu(f"s_cmp_ge_u32 s{sCH}, 2"), salu(f"s_cselect_b32 s{sBIT}, s{sBIT}, 0")]),
               Item([salu(f"s_sub_u32 s{sSH}, s{sTM}, 4")]), Item([salu(f"s_and_b32 s{sSH}, s{sSH}, 31")]),
               Item([salu(f"s_cmp_ge_u32 s{sCH}, 3"), salu(f"s_cselect_b32 s{sTHR}, 8, 0")]),
               Item([salu(f"s_cmp_eq_u32 s{sWV}, 0"), salu(f"s_cselect_b32 s{sTHR}, s{sTHR}, 0")])]
        sig = [valu(f"v_mov_b32 v{vD}, s{sBIT}"),
               vmem(f"buffer_atomic_add v{vD}, v{vSIG}, {sr(sWS)}, s{sCO} offen sc1", tag="sig")]
        for w in range(4):
            hd, f = w >> 1, w & 1
            winc = sINCB if w == 3 else sINCA
            is_last = last and w == 3
            kw = dict(readahead=not is_last, dma=[("W", winc)] if dma else [], setup=not is_last, sect="p4")
            m = mf_op(buf, hd, f)
            if w == 0:
                out += phase("O", m, "O", front=[sc0], queues=[parts[0]], sync_vm=[("opt", ("pst", buf)), "poll"],
                             pre_bar=check_poll(), post_sync=sig, **kw)
            elif w == 1:
                out.append(wait_vm(("opt", ("red", 0))))
                fin = red_finish(sOOP, e=16 + 8)
                out += phase("O", m, "O", pre=red_mfmas(), queues=[parts[1], fin], **kw)
            elif w == 2:
                uo = [Item(x) for x in unit_offsets()]
                uo += red_loads()
                uo.append(Item([salu(f"s_mov_b32 s{sOOP}, s{sOO}")]))
                out += phase("O", m, "O", queues=[uo], **kw)
            else:
                pl = [Item([vmem(f"buffer_load_dword v{vP}, v{vPO}, {sr(sWS)}, s{sCO} offen sc1", tag="poll")], earliest=4, alone=True),
                      Item([salu(f"s_add_u32 s{sCH}, s{sCH}, 1")])]
                out += phase("O", m, "O", queues=[pl], **kw)
        return out

    def signal(bits):
        return [raw(f"v_mov_b32 v{vD}, {bits:#x}"),
                vmem(f"buffer_atomic_add v{vD}, v{vSIG}, {sr(sWS)}, s{sCO} offen sc1", tag="sig")]

    def tail_poll(name, shift, mask, val):
        return [raw(f"s_cmp_eq_u32 s{sWV}, 0"), raw(f"s_cbranch_scc0 L_{name}d"),
                raw(f"s_mov_b32 s{sTM}, 0"), label(f"L_{name}"),
                raw(f"buffer_load_dword v{vP}, v{vPO}, {sr(sWS)}, s{sCO} offen sc1"), raw("s_waitcnt vmcnt(0)"),
                raw(f"v_readfirstlane_b32 s{sPV}, v{vP}"), raw(f"s_add_u32 s{sTM}, s{sTM}, 1"),
                raw(f"s_lshr_b32 s{sPV}, s{sPV}, {shift}"), raw(f"s_and_b32 s{sPV}, s{sPV}, {mask:#x}"),
                raw(f"s_cmp_eq_u32 s{sPV}, {val:#x}"), raw(f"s_cbranch_scc1 L_{name}d"),
                raw("s_sleep 1"),
                raw(f"s_cmp_lt_u32 s{sTM}, 0x200000"), raw(f"s_cbranch_scc1 L_{name}"), label(f"L_{name}d"),
                raw("s_barrier")]

    def unit_tail(y, base, so):
        L = []
        for x in unit_offsets(y):
            L += x
        L.append(salu(f"s_mov_b32 s{so}, s{sOO}"))
        for it in red_loads(base=base):
            L += it.ins
        return L

    def sum_tail(base, so):
        L = [wait_vm(("red", base))] + red_mfmas(base=base, d=32) + [salu("s_nop 7")]
        for it in red_finish(so, d=32, o=40):
            L += it.ins
        return L

    def pipe_tail():
        L = [salu("s_nop 7")]
        for it in epi_items(0):
            L += it.ins
        L += [salu(f"s_mov_b32 s{sSH}, 16"), salu(f"s_cmp_eq_u32 s{sWV}, 0"), salu(f"s_cselect_b32 s{sTHR}, 8, 0"),
              wait_vm(("pst", 1), "poll")] + check_poll() + [raw("s_barrier")]
        L += signal(1 << 20)
        L += unit_tail(4, 44, 82)
        L += sum_tail(0, sOOP)
        L += [wait_vm(("pst", 0)), raw("s_barrier")]
        L += stamp("st_drain")
        L += signal(1 << 24)
        L += sum_tail(44, 82)
        L += tail_poll("tpoll", 20, 0xff, 0x88)
        L += stamp("poll_ok")
        L += unit_tail(5, 44, 82)
        L += unit_tail(6, 76, 83)
        L += sum_tail(44, 82)
        L += sum_tail(76, 83)
        return L

    if CFG.get("pipe"):
        P += pipe_setup()
    P += restart("O", extra_vm=["o0"])
    P += stamp("p4_go")
    if CFG.get("pipe"):
        for w in range(4):
            kw = dict(sync_vm=["poll"], pre_bar=check_poll(dbg=True, mask=0xffff)) if w == 1 else {}
            P += phase("O", mf_op(0, w >> 1, w & 1), "O", dma=[("W", sINCB if w == 3 else sINCA)], sect="p4", **kw)
    else:
        P += chunk(0, False)
    if CFG.get("pipe"):
        lp = [label("L_p4l")] + pchunk(1) + pchunk(0)
    else:
        lp = [label("L_p4l")] + chunk(1, True) + chunk(0, True)
    if CFG.get("unroll4"):
        P += lp[1:] + pchunk(1) + pchunk(0)
    else:
        lp += [raw(f"s_sub_u32 s{sCNT}, s{sCNT}, 1"), raw(f"s_cmp_lg_u32 s{sCNT}, 0"), raw("s_cbranch_scc1 L_p4l")]
        P.append(raw(f"s_mov_b32 s{sCNT}, 2"))
        P.append(Loop(lp, 2))
    if CFG.get("pipe"):
        P += pchunk(1, dma=False)
        P += pchunk(0, last=True, dma=False)
        P += stamp("p4_end")
        P += pipe_tail()
    else:
        P += chunk(1, True, dma=False)
        P += chunk(0, True, last=True, dma=False)
        P.append(salu("s_nop 7"))
        for it in epilogue_items(0, [0] * 6):
            P += it.ins
    if not CFG.get("pipe"):
        P += stamp("p4_end")
        if CFG["fuse"]:
            P += fused_reduce()
    P.append(raw("s_waitcnt vmcnt(0)"))
    P += stamp("drained")
    P += prof_out()
    P += fine_out()
    P.append(raw("s_waitcnt vmcnt(0)"))
    P.append(label("L_exit"))
    P.append(raw("s_endpgm"))
    for n, par in stubs:
        P += [label(f"L_stub{n}"), raw(f"s_call_b64 {sr(sRET,2)}, L_rare{par}"), raw(f"s_branch L_back{n}")]
    for k in spins:
        P += spin_stub(k)
    R = rare_path(0) + rare_path(1) + [label("L_codeend")]
    return P, R


def fused_reduce():
    sDB, sOUT = 8, 12
    sG, sHP, sSB = 54, 55, 56
    L = []
    A = lambda t: L.append(raw(t))
    A("s_waitcnt vmcnt(0)")
    A("s_barrier")
    L.extend(stamp("st_drain"))
    A("s_load_dwordx2 s[8:9], s[0:1], 88")
    A("s_load_dwordx2 s[12:13], s[0:1], 80")
    A(f"s_lshr_b32 s{sHP}, s{sHEAD}, 1")
    A(f"s_mov_b32 s10, 256")
    A(f"s_mov_b32 s11, 0x00020000")
    A(f"s_mov_b32 s14, 5505024")
    A(f"s_mov_b32 s15, 0x00020000")
    A(f"v_mov_b32 v0, 1")
    A(f"s_lshl_b32 s57, s{sGRP}, 2")
    A(f"v_mov_b32 v1, s57")
    A("s_waitcnt lgkmcnt(0)")
    A(f"s_cmp_eq_u32 s{sWV}, 0")
    A("s_cbranch_scc0 L_nosig")
    A("s_mov_b64 s[58:59], exec")
    A("s_mov_b64 exec, 1")
    A("buffer_atomic_add v0, v1, s[8:11], 0 offen sc1")
    A("s_mov_b32 s57, 0")
    L.append(label("L_poll"))
    A("buffer_load_dword v2, v1, s[8:11], 0 offen sc1")
    A("s_waitcnt vmcnt(0)")
    A("v_readfirstlane_b32 s60, v2")
    A("s_add_u32 s57, s57, 1")
    A("s_cmp_ge_u32 s60, 8")
    A("s_cbranch_scc1 L_pollend")
    A("s_cmp_lt_u32 s57, 0x400000")
    A("s_cbranch_scc1 L_poll")
    L.append(label("L_pollend"))
    A("s_mov_b64 exec, s[58:59]")
    L.append(label("L_nosig"))
    A("s_barrier")
    L.extend(stamp("poll_ok"))
    A(f"s_mul_i32 s{sSB}, s{sGRP}, {8*172032}")
    A(f"s_mul_i32 s57, s{sHP}, 21")
    A(f"s_add_u32 s57, s57, s{sWV}")
    A(f"s_and_b32 s58, s{sGRP}, 15")
    A(f"s_lshr_b32 s59, s{sGRP}, 4")
    A("s_mul_i32 s58, s58, 192")
    A("s_mul_i32 s59, s59, 896")
    A(f"v_and_b32 v4, 15, v{VL}")
    A("v_mul_u32_u24 v4, 1792, v4")
    A(f"v_lshrrev_b32 v5, 4, v{VL}")
    A("v_lshlrev_b32 v5, 3, v5")
    A("v_add_u32 v4, v4, v5")
    def loads(k):
        A(f"s_add_u32 s60, s57, {4*k}")
        A("s_lshl_b32 s60, s60, 10")
        A(f"s_add_u32 s60, s60, s{sSB}")
        for j in range(8):
            r = 8 + 32 * k + 4 * j
            A(f"buffer_load_dwordx4 v[{r}:{r+3}], v{LN16}, {sr(sWS)}, s60 offen sc1")
            if j < 7:
                A("s_add_u32 s60, s60, 172032")
    def finish(k, pending):
        A(f"s_add_u32 s18, s57, {4*k}")
        A(f"s_mul_hi_u32 s21, s18, {-(-(1<<32)//42)}")
        A("s_mul_i32 s22, s21, 42")
        A("s_sub_u32 s22, s18, s22")
        A(f"s_mul_hi_u32 s23, s22, {-(-(1<<32)//6)}")
        A("s_mul_i32 s19, s23, 6")
        A("s_sub_u32 s19, s22, s19")
        A("s_cmp_ge_u32 s19, 3")
        A("s_cselect_b32 s20, 1, 0")
        A("s_mul_i32 s16, s20, 3")
        A("s_sub_u32 s16, s19, s16")
        A("s_mul_i32 s17, s21, 48")
        A("s_add_u32 s17, s17, s58")
        A("s_lshl_b32 s16, s16, 4")
        A("s_add_u32 s17, s17, s16")
        A("s_mul_i32 s17, s17, 1792")
        A("s_add_u32 s17, s17, s59")
        A("s_lshl_b32 s16, s23, 7")
        A("s_add_u32 s17, s17, s16")
        A("s_lshl_b32 s16, s20, 6")
        A("s_add_u32 s17, s17, s16")
        acc = 208
        for j in range(8):
            A(f"s_waitcnt vmcnt({pending + 7 - j})")
            for r in range(4):
                src = 8 + 32 * k + 4 * j + r
                if j == 0:
                    A(f"v_lshlrev_b32 v{acc+2*r}, 16, v{src}")
                    A(f"v_and_b32 v{acc+1+2*r}, 0xffff0000, v{src}")
                else:
                    A(f"v_lshlrev_b32 v6, 16, v{src}")
                    A(f"v_and_b32 v7, 0xffff0000, v{src}")
                    A(f"v_add_f32 v{acc+2*r}, v{acc+2*r}, v6")
                    A(f"v_add_f32 v{acc+1+2*r}, v{acc+1+2*r}, v7")
        o = 216 + 4 * (k & 1)
        for r in range(4):
            A(f"v_cvt_pk_bf16_f32 v{o+r}, v{acc+2*r}, v{acc+1+2*r}")
        A(f"buffer_store_dwordx2 v[{o}:{o+1}], v4, s[12:15], s17 offen")
        A(f"buffer_store_dwordx2 v[{o+2}:{o+3}], v4, s[12:15], s17 offen offset:32")
    for k in range(5):
        loads(k)
    A(f"s_cmp_eq_u32 s{sWV}, 0")
    A("s_cbranch_scc0 L_red5")
    loads(5)
    for k in range(6):
        finish(k, (5 - k) * 8 + 2 * k)
    A("s_branch L_redend")
    L.append(label("L_red5"))
    for k in range(5):
        finish(k, (4 - k) * 8 + 2 * k)
    L.append(label("L_redend"))
    return L


def reduce_kernel():
    L = f"""
s_cmp_ge_u32 s2, 1344
s_cbranch_scc1 L_rexit
s_load_dwordx2 s[4:5], s[0:1], 80
s_load_dwordx2 s[6:7], s[0:1], 96
v_lshrrev_b32 v1, 6, v0
v_and_b32 v2, 63, v0
v_readfirstlane_b32 s3, v1
s_lshl_b32 s16, s2, 2
s_add_u32 s16, s16, s3
s_mul_hi_u32 s17, s16, {-(-(1<<32)//168)}
s_mul_i32 s18, s17, 168
s_sub_u32 s18, s16, s18
s_waitcnt lgkmcnt(0)
s_mov_b32 s8, s6
s_mov_b32 s9, s7
s_mov_b32 s10, 288620544
s_mov_b32 s11, 0x00020000
s_mov_b32 s12, s4
s_mov_b32 s13, s5
s_mov_b32 s14, 5505024
s_mov_b32 s15, 0x00020000
s_mul_i32 s19, s17, {8*172032}
s_lshl_b32 s20, s18, 10
s_add_u32 s19, s19, s20
v_lshlrev_b32 v3, 4, v2
""".strip().splitlines()
    for j in range(8):
        L.append(f"buffer_load_dwordx4 v[{8+4*j}:{11+4*j}], v3, s[8:11], s19 offen")
        if j < 7:
            L.append("s_add_u32 s19, s19, 172032")
    L += f"""
s_mul_hi_u32 s21, s18, {-(-(1<<32)//42)}
s_mul_i32 s22, s21, 42
s_sub_u32 s22, s18, s22
s_mul_hi_u32 s23, s22, {-(-(1<<32)//6)}
s_mul_i32 s24, s23, 6
s_sub_u32 s24, s22, s24
s_cmp_ge_u32 s24, 3
s_cselect_b32 s25, 1, 0
s_mul_i32 s26, s25, 3
s_sub_u32 s26, s24, s26
s_and_b32 s27, s17, 15
s_lshr_b32 s28, s17, 4
s_mul_i32 s27, s27, 192
s_mul_i32 s29, s21, 48
s_add_u32 s27, s27, s29
s_lshl_b32 s29, s26, 4
s_add_u32 s27, s27, s29
s_mul_i32 s27, s27, 1792
s_mul_i32 s28, s28, 896
s_add_u32 s27, s27, s28
s_lshl_b32 s29, s23, 7
s_add_u32 s27, s27, s29
s_lshl_b32 s29, s25, 6
s_add_u32 s27, s27, s29
v_and_b32 v4, 15, v2
v_mul_u32_u24 v4, 1792, v4
v_lshrrev_b32 v5, 4, v2
v_lshlrev_b32 v5, 3, v5
v_add_u32 v4, v4, v5
""".strip().splitlines()
    for j in range(8):
        L.append(f"s_waitcnt vmcnt({7-j})")
        for r in range(4):
            src = 8 + 4 * j + r
            if j == 0:
                L.append(f"v_lshlrev_b32 v{40+2*r}, 16, v{src}")
                L.append(f"v_and_b32 v{41+2*r}, 0xffff0000, v{src}")
            else:
                L.append(f"v_lshlrev_b32 v6, 16, v{src}")
                L.append(f"v_and_b32 v7, 0xffff0000, v{src}")
                L.append(f"v_add_f32 v{40+2*r}, v{40+2*r}, v6")
                L.append(f"v_add_f32 v{41+2*r}, v{41+2*r}, v7")
    for r in range(4):
        L.append(f"v_cvt_pk_bf16_f32 v{48+r}, v{40+2*r}, v{41+2*r}")
    L += ["buffer_store_dwordx2 v[48:49], v4, s[12:15], s27 offen",
          "buffer_store_dwordx2 v[50:51], v4, s[12:15], s27 offen offset:32",
          "s_waitcnt vmcnt(0)"]
    return L


def build():
    P, R = main_kernel()
    prog = P + R
    info = solve_waits(P)

    def strip(items):
        out = []
        for it in flat(items):
            if isinstance(it, Ins):
                if CFG.get("nodma") and it.kind == "vmem" and it.tag == "dma": continue
                if CFG.get("nodma") and it.kind == "wvm": continue
                if CFG.get("nobar") and it.text == "s_barrier": continue
                if CFG.get("nolds") and it.kind in ("ds", "wlg"): continue
                if CFG.get("nost") and it.kind == "vmem" and it.tag in CFG["nost"]: continue
                if CFG.get("nochk") and it.text and it.text.startswith("s_cbranch_vccnz L_stub"): continue
                out.append(it)
            elif isinstance(it, (Loop, Repeat, Cond)):
                it.body = strip(it.body); out.append(it)
            else:
                out.append(it)
        return out
    prog = strip(prog)
    out = []
    fuse = CFG["fuse"]
    k1 = KF if fuse and not CFG.get("aslist") else K1
    if fuse and not CFG.get("aslist"):
        out.append(f"; @launch grid=(256,1,1) block=(256,1,1) lds=163840")
    else:
        out.append(f"; @launch kernel={k1} grid=(256,1,1) block=(256,1,1) lds=163840")
        if not fuse:
            out.append(f"; @launch kernel={K2} grid=(1344,1,1) block=(256,1,1) lds=0")
    out.append('.amdgcn_target "amdgcn-amd-amdhsa--gfx950"')
    out.append(".text")
    out += [f".globl {k1}", ".p2align 8", f".type {k1},@function", f"{k1}:"]
    emit(prog, out)
    kernels = [(k1, 512, 102 if CFG.get('prof') else 100, 256)]
    if not fuse:
        out += [f".globl {K2}", ".p2align 8", f".type {K2},@function", f"{K2}:"]
        out += ["    " + x for x in reduce_kernel()]
        out += ["L_rexit:", "    s_endpgm"]
        kernels.append((K2, 64, 40, 64))
    out.append('.section .rodata,"a"')
    for k, nv, ns, ao in kernels:
        out += [".p2align 6", f".amdhsa_kernel {k}",
                f"  .amdhsa_next_free_vgpr {nv}", f"  .amdhsa_next_free_sgpr {ns}", f"  .amdhsa_accum_offset {ao}",
                "  .amdhsa_group_segment_fixed_size 0", "  .amdhsa_kernarg_size 104",
                "  .amdhsa_user_sgpr_count 2", "  .amdhsa_user_sgpr_kernarg_segment_ptr 1",
                "  .amdhsa_system_sgpr_workgroup_id_x 1", ".end_amdhsa_kernel"]
    return "\n".join(out) + "\n", info


if __name__ == "__main__":
    txt, info = build()
    path = CFG.get("out", f"cdna_kernels/{NAME}.s")
    open(path, "w").write(txt)
    print("wrote", path, len(txt), "bytes", info, FINE)
    if CFG.get("plan"):
        print(plan_qp())
```
